```python
import torch

def _softmax(x, axis=-1):
    return torch.softmax(x, dim=axis)
def _gelu(x):
    return torch.nn.functional.gelu(x, approximate="tanh")
def _silu(x):
    return torch.nn.functional.silu(x)
def _sigmoid(x):
    return torch.sigmoid(x)
def _layernorm(x, axis=-1, eps=1e-5):
    m = x.mean(dim=axis, keepdim=True)
    v = x.var(dim=axis, keepdim=True, unbiased=False)
    return (x - m) / torch.sqrt(v + eps)
def _scatter_add(tgt, idx, src, axis=0):
    return tgt.clone().index_add_(axis, idx, src)
def _segment_sum(src, seg, n):
    out = torch.zeros((n,) + src.shape[1:], dtype=src.dtype)
    return out.index_add_(0, seg, src)
def _pad(x, pw):
    flat = tuple(v for pair in reversed(pw) for v in pair)
    return torch.nn.functional.pad(x, flat)

kernel_name = 'interleave_layers__sliding_block_cached__mixer_channel_mlp__decode'

def setup_inputs():

    _w = (lambda a: (lambda t: t.to(torch.bfloat16) if t.is_floating_point() else t)(torch.as_tensor(a)))
    def _A_setup():
        B, Sq, D = 1, 1, 448
        Hq, Hkv, Sk, Dh = 16, 8, 65536, 256
        assert Hq % Hkv == 0, (Hq, Hkv)
        return {
            "x": _w((lambda *s: torch.randn(*s, dtype=torch.bfloat16) * 0.05)(B, Sq, D)),
            "k_cache": _w((lambda *s: torch.randn(*s, dtype=torch.bfloat16) * 3.2)(B, Hkv, Sk, Dh)),
            "v_cache": _w((lambda *s: torch.randn(*s, dtype=torch.bfloat16) * 3.2)(B, Hkv, Sk, Dh)),
            "wq": _w((lambda *s: torch.randn(*s, dtype=torch.bfloat16) * 3.2)(D, Hq * Dh) * (D ** -0.5)),
            "wo": _w((lambda *s: torch.randn(*s, dtype=torch.bfloat16) * 3.2)(Hq * Dh, D) * ((Hq * Dh) ** -0.5)),
        }
    _A_in = _A_setup()

    def _B_setup():
        B, S, D, F = 1, 1, 448, 1792
        return {
            "x": _w((lambda *s: torch.randn(*s, dtype=torch.bfloat16) * 0.05)(B, S, D)),
            "w1": _w((lambda *s: torch.randn(*s, dtype=torch.bfloat16) * 3.2)(D, F) * (D ** -0.5)),
            "b1": _w((lambda *s: torch.randn(*s, dtype=torch.bfloat16) * 3.2)(F)),
            "w2": _w((lambda *s: torch.randn(*s, dtype=torch.bfloat16) * 3.2)(F, D) * (F ** -0.5)),
            "b2": _w((lambda *s: torch.randn(*s, dtype=torch.bfloat16) * 3.2)(D)),
        }
    _B_in = _B_setup()

    return {
        "A_x": _A_in["x"],
        "A_k_cache": _A_in["k_cache"],
        "A_v_cache": _A_in["v_cache"],
        "A_wq": _A_in["wq"],
        "A_wo": _A_in["wo"],
        "B_x": _B_in["x"],
        "B_w1": _B_in["w1"],
        "B_b1": _B_in["b1"],
        "B_w2": _B_in["w2"],
        "B_b2": _B_in["b2"],
    }

def reference(A_x, A_k_cache, A_v_cache, A_wq, A_wo, B_x, B_w1, B_b1, B_w2, B_b2):
    def _A_ref(x, k_cache, v_cache, wq, wo):
        B, Sq, D = x.shape
        Hq, Dh = 16, 256
        Hkv, Sk = k_cache.shape[1], k_cache.shape[2]
        W = min(4096, max(256, Sk // 4))
        rep = Hq // Hkv
        q = (lambda x, *d: x.permute(*d))((x @ wq).reshape(B, Sq, Hq, Dh), 0, 2, 1, 3)
        k = (lambda x, n, axis: torch.repeat_interleave(x, n, dim=axis))(k_cache[:, :, Sk - W:, :], rep, axis=1)
        v = (lambda x, n, axis: torch.repeat_interleave(x, n, dim=axis))(v_cache[:, :, Sk - W:, :], rep, axis=1)
        scores = torch.einsum("bhqd,bhkd->bhqk", q, k) * (Dh ** -0.5)
        p = _softmax(scores, axis=-1)
        o = torch.einsum("bhqk,bhkd->bhqd", p, v)
        return (lambda x, *d: x.permute(*d))(o, 0, 2, 1, 3).reshape(B, Sq, Hq * Dh) @ wo

    def _B_ref(x, w1, b1, w2, b2):
        y = _layernorm(x, axis=-1)
        h = _gelu(torch.einsum("bsd,df->bsf", y, w1) + b1)
        return torch.einsum("bsf,fd->bsd", h, w2) + b2

    x = A_x
    x = x + _A_ref(_layernorm(x, axis=-1), A_k_cache, A_v_cache, A_wq, A_wo)
    x = x + _B_ref(_layernorm(x, axis=-1), B_w1, B_b1, B_w2, B_b2)
    x = x + _A_ref(_layernorm(x, axis=-1), A_k_cache, A_v_cache, A_wq, A_wo)
    x = x + _B_ref(_layernorm(x, axis=-1), B_w1, B_b1, B_w2, B_b2)
    return x
```

```python
import sys

NAME = "interleave_layers__sliding_block_cached__mixer_channel_mlp__decode"
DEBUG = int(sys.argv[1]) if len(sys.argv) > 1 else 0
STAMP = int(sys.argv[2]) if len(sys.argv) > 2 else 0
OUT = sys.argv[3] if len(sys.argv) > 3 else f"cdna_kernels/{NAME}.s"

WS_Q = 0x000000
WS_XG1 = 0x010000
WS_XG2 = 0x020000
WS_XS1 = 0x030000
WS_XS2 = 0x040000
WS_H2 = 0x100000
WS_RS1 = 0x200000
WS_RS2 = 0x300000
WS_DBG = 0x400000
WS_STAMP = 0x800000

L_WQ = 131072
L_W1 = L_WQ + 14336
L_XN = L_W1 + 7168
L_Q = L_XN + 1024
L_P = L_Q + 1024
L_M = L_P + 512
L_L = L_M + 32
L_MODE = L_L + 32
LDS_BYTES = 155648

SPIN = 400000
LOG2E = 0x3fb8aa3b

lines = []
lab_id = [0]


def A(s):
    lines.append("    " + s)


def LBL(s):
    lines.append(s + ":")


def newlab(p):
    lab_id[0] += 1
    return f"L_{p}_{lab_id[0]}"


def vr(a, n=1):
    return f"v{a}" if n == 1 else f"v[{a}:{a+n-1}]"


def nop(n):
    while n > 0:
        k = min(n, 16)
        A(f"s_nop {k-1}")
        n -= k


S_X, S_K, S_V, S_WQ, S_WO, S_W1, S_B1, S_W2, S_B2, S_OUT, S_DBG, S_WS = 4, 6, 8, 10, 12, 16, 18, 20, 22, 24, 26, 28
sG, sJ, sW, sTAG, sMODE, sSPIN = 30, 31, 32, 33, 34, 35
sEX = 36
sT0 = 38
sT2 = 40
sT3 = 41
sVB = 42
sLB = 44
sJC = 45
sPK = 48
sM56 = 56
sM4 = 58
sM32 = 60
sMH1 = 62
sMT1 = 64
sM2 = 66
sM8 = 68
sM16 = 70
sC0 = 72
sC1 = 73
sC2 = 74
sC3 = 75
sLAYER = 76
sST = 80
sRL = 77


def sp(a):
    return f"s[{a}:{a+1}]"


def st_local(op, rest):
    lf = newlab("f")
    le = newlab("e")
    A(f"s_cmp_eq_u32 s{sMODE}, 1")
    A(f"s_cbranch_scc1 {lf}")
    for r in rest:
        A(f"{op} {r} sc1")
    A(f"s_branch {le}")
    LBL(lf)
    for r in rest:
        A(f"{op} {r}")
    LBL(le)


def poll(loads, regs, tmp, abort="L_abort"):
    l = newlab("poll")
    ld = newlab("pd")
    A(f"s_mov_b32 s{sSPIN}, 0")
    LBL(l)
    for x in loads:
        A(f"{x} sc1")
    A(f"s_add_u32 s{sSPIN}, s{sSPIN}, 1")
    A(f"s_cmp_gt_u32 s{sSPIN}, {SPIN}")
    A(f"s_cbranch_scc1 {abort}")
    A("s_waitcnt vmcnt(0)")
    A(f"v_and_b32 {vr(tmp)}, s{sTAG}, {vr(regs[0])}")
    for r in regs[1:]:
        A(f"v_and_b32 {vr(tmp)}, {vr(tmp)}, {vr(r)}")
    A(f"v_cmp_ne_u32 vcc, 0, {vr(tmp)}")
    A("s_nop 1")
    A("s_cmp_eq_u64 vcc, exec")
    A(f"s_cbranch_scc0 {l}")
    LBL(ld)


def dpp(op, d, s, ror):
    A(f"{op}_dpp {vr(d)}, {vr(s)}, {vr(d)} row_ror:{ror} row_mask:0xf bank_mask:0xf")


def allreduce(op, regs, tmps, rors, swap16=True, swap32=True):
    n = len(regs)
    nop(2)
    for ro in rors:
        for r in regs:
            dpp(op, r, r, ro)
        if n < 3:
            nop(3 - n)
    for which, en in (("16", swap16), ("32", swap32)):
        if not en:
            continue
        for r, t in zip(regs, tmps):
            A(f"v_mov_b32 {vr(t)}, {vr(r)}")
        nop(2)
        for r, t in zip(regs, tmps):
            A(f"v_permlane{which}_swap_b32 {vr(r)}, {vr(t)}")
        nop(1)
        for r, t in zip(regs, tmps):
            A(f"{op} {vr(r)}, {vr(r)}, {vr(t)}")


dbg_slot = [0]


def dump(regs, slot, atmp):
    if not DEBUG:
        return
    A(f"s_lshl_b32 s{sT2}, s2, 14")
    A(f"s_add_u32 s{sT2}, s{sT2}, {WS_DBG + slot*256}")
    A(f"v_lshlrev_b32 {vr(atmp)}, 2, v0")
    A(f"v_add_u32 {vr(atmp)}, s{sT2}, {vr(atmp)}")
    for i, r in enumerate(regs):
        A(f"global_store_dword {vr(atmp)}, {vr(r)}, {sp(S_WS)} offset:{i*256}")


stamp_n = [0]


def stamp(idx):
    if not STAMP:
        return
    A(f"s_memrealtime s[{sST+2*idx}:{sST+2*idx+1}]")


def stamp_flush(n, base_slot, vt, vt2):
    if not STAMP:
        return
    A("s_waitcnt lgkmcnt(0)")
    A(f"s_lshl_b32 s{sT2}, s2, 3")
    A(f"s_add_u32 s{sT2}, s{sT2}, s{sW}")
    A(f"s_lshl_b32 s{sT2}, s{sT2}, 8")
    A(f"s_add_u32 s{sT2}, s{sT2}, {WS_STAMP + base_slot*4}")
    A(f"v_mov_b32 {vr(vt)}, s{sT2}")
    for i in range(n):
        A(f"v_mov_b32 {vr(vt2)}, s{sST+2*i}")
        A(f"global_store_dword {vr(vt)}, {vr(vt2)}, {sp(S_WS)} offset:{4*i}")
        nop(1)


hdr = open(f"cdna_kernels/{NAME}.s.ref").read().split("\n")
head = []
for h in hdr:
    if h.startswith("; @launch"):
        head.append(f"; @launch grid=(256,1,1) block=(320,1,1) lds={LDS_BYTES}")
        break
    head.append(h)
lines.extend(head)
lines.append('.amdgcn_target "amdgcn-amd-amdhsa--gfx950"')
lines.append(".text")
lines.append(f".globl {NAME}_kernel")
lines.append(".p2align 8")
lines.append(f".type {NAME}_kernel,@function")
LBL(f"{NAME}_kernel")

A("s_cmp_ge_u32 s2, 256")
A("s_cbranch_scc1 L_end")
stamp(0)
A("s_load_dwordx16 s[4:19], s[0:1], 0")
A("s_load_dwordx8 s[20:27], s[0:1], 64")
A("s_load_dwordx2 s[28:29], s[0:1], 96")
A(f"s_and_b32 s{sG}, s2, 7")
A(f"s_lshr_b32 s{sJ}, s2, 3")
A(f"s_min_u32 s{sJC}, s{sJ}, 27")
A("v_lshrrev_b32 v1, 6, v0")
A("v_and_b32 v0, 63, v0")
A("s_nop 1")
A(f"v_readfirstlane_b32 s{sW}, v1")
A(f"s_mov_b32 s{sTAG}, 1")
A(f"s_mov_b32 s{sMODE}, 0")
A(f"s_mov_b32 s{sLAYER}, 0")
A(f"s_mov_b32 s{sM56}, -1")
A(f"s_mov_b32 s{sM56+1}, 0x00ffffff")
A(f"s_mov_b32 s{sM4}, 15")
A(f"s_mov_b32 s{sM4+1}, 0")
A(f"s_mov_b32 s{sM32}, -1")
A(f"s_mov_b32 s{sM32+1}, 0")
A(f"s_mov_b32 s{sMH1}, 0xffff0000")
A(f"s_mov_b32 s{sMH1+1}, 0xffff0000")
A(f"s_mov_b32 s{sMT1}, 0")
A(f"s_mov_b32 s{sMT1+1}, -1")
A(f"s_mov_b32 s{sM2}, 0x00030003")
A(f"s_mov_b32 s{sM2+1}, 0x00030003")
A(f"s_mov_b32 s{sM8}, 0xff")
A(f"s_mov_b32 s{sM8+1}, 0")
A(f"s_mov_b32 s{sM16}, 0xffff")
A(f"s_mov_b32 s{sM16+1}, 0")
A(f"s_mov_b32 s{sC0}, {LOG2E:#x}")
A("s_waitcnt lgkmcnt(0)")
A(f"s_cmp_eq_u32 s{sW}, 4")
A("s_cbranch_scc1 L_ctrl")

KF, VF, QF, SA, PF, OA = 16, 80, 144, 176, 184, 200
vKA = 216
vVA = 224
vQA, vPA, vPW, vMW, vMR, vMR2, vOS, vML = 228, 229, 230, 231, 232, 233, 234, 235
vt = 236

A(f"s_lshl_b32 s{sT2}, s{sG}, 25")
A(f"s_add_u32 s{sT2}, s{sT2}, 31457280")
A(f"s_lshl_b32 s{sT3}, s{sJ}, 16")
A(f"s_add_u32 s{sT2}, s{sT2}, s{sT3}")
A(f"s_lshl_b32 s{sT3}, s{sW}, 14")
A(f"s_add_u32 s{sT3}, s{sT2}, s{sT3}")
A(f"s_add_u32 s{sT0}, s{S_K}, s{sT3}")
A(f"s_addc_u32 s{sT0+1}, s{S_K+1}, 0")
A(f"s_lshl_b32 s{sT3}, s{sW}, 7")
A(f"s_add_u32 s{sT3}, s{sT2}, s{sT3}")
A(f"s_add_u32 s{sVB}, s{S_V}, s{sT3}")
A(f"s_addc_u32 s{sVB+1}, s{S_V+1}, 0")
A(f"s_lshl_b32 s{sLB}, s{sW}, 15")
A("v_lshrrev_b32 v1, 5, v0")
A("v_and_b32 v2, 31, v0")
A("v_xor_b32 v2, v2, v1")
A("v_lshlrev_b32 v2, 4, v2")
A("v_lshlrev_b32 v1, 9, v1")
A("v_or_b32 v2, v2, v1")
for i in range(16):
    blk = i >> 2
    if (i & 3) == 0:
        A(f"s_add_u32 m0, s{sLB}, {4096*blk}")
    c = ((2 * i) & 14) * 16
    A(f"v_xor_b32 v3, {c}, v2")
    A(f"v_add_u32 v3, {4096*blk}, v3")
    A(f"global_load_lds_dwordx4 v3, {sp(sT0)} offset:{1024*(i&3)}")
A("v_lshrrev_b32 v1, 3, v0")
A("v_and_b32 v4, 7, v0")
A("v_lshrrev_b32 v5, 1, v4")
A("v_lshrrev_b32 v6, 1, v1")
A("v_and_b32 v6, 1, v6")
A("v_xor_b32 v5, v5, v6")
A("v_lshlrev_b32 v5, 5, v5")
A("v_and_b32 v4, 1, v4")
A("v_lshlrev_b32 v4, 4, v4")
A("v_or_b32 v5, v5, v4")
A("v_lshlrev_b32 v1, 9, v1")
A("v_or_b32 v5, v5, v1")
A("v_xor_b32 v6, 64, v5")
for i in range(16):
    A(f"s_add_u32 m0, s{sLB}, {16384 + 1024*i}")
    A(f"v_add_u32 v3, {4096*i}, v{5 + (i & 1)}")
    A(f"global_load_lds_dwordx4 v3, {sp(sVB)}")
A("v_and_b32 v1, 15, v0")
A("v_lshrrev_b32 v2, 4, v0")
A("v_xor_b32 v3, v2, v1")
A("v_lshlrev_b32 v3, 4, v3")
A("v_lshlrev_b32 v4, 9, v1")
A("v_or_b32 v3, v3, v4")
A(f"v_add_u32 v3, s{sLB}, v3")
for kk in range(8):
    A(f"v_xor_b32 {vr(vKA+kk)}, {64*kk}, v3")
A("v_lshrrev_b32 v3, 2, v1")
A("v_and_b32 v4, 3, v0")
A("v_lshrrev_b32 v5, 1, v3")
A("v_and_b32 v5, 1, v5")
A("v_and_b32 v6, 1, v2")
A("v_lshlrev_b32 v6, 1, v6")
A("v_or_b32 v5, v5, v6")
A("v_lshlrev_b32 v6, 3, v2")
A("v_add_u32 v6, v6, v3")
A("v_lshlrev_b32 v6, 7, v6")
A("v_lshlrev_b32 v4, 3, v4")
A("v_add_u32 v6, v6, v4")
A(f"v_add_u32 v6, s{sLB}, v6")
A("v_add_u32 v6, 16384, v6")
for t in range(4):
    A(f"v_xor_b32 v7, {t}, v5")
    A("v_lshlrev_b32 v7, 5, v7")
    A(f"v_add_u32 {vr(vVA+t)}, v6, v7")
A("v_and_b32 v3, 1, v0")
A("v_lshlrev_b32 v4, 4, v2")
A("v_lshlrev_b32 v5, 9, v3")
A("v_add_u32 v5, v5, v4")
A(f"v_add_u32 {vr(vQA)}, {L_Q}, v5")
A("v_lshlrev_b32 v5, 8, v3")
A("v_add_u32 v5, v5, v4")
A(f"v_add_u32 {vr(vPA)}, {L_P}, v5")
A("v_lshlrev_b32 v5, 2, v3")
A(f"v_add_u32 {vr(vMR2)}, {L_M}, v5")
A("v_and_b32 v4, 1, v2")
A("v_lshlrev_b32 v5, 8, v4")
A("v_lshrrev_b32 v6, 1, v2")
A("v_lshlrev_b32 v6, 4, v6")
A("v_add_u32 v6, v6, v1")
A(f"s_lshl_b32 s{sT2}, s{sW}, 5")
A(f"v_add_u32 v6, s{sT2}, v6")
A("v_lshlrev_b32 v6, 1, v6")
A("v_add_u32 v5, v5, v6")
A(f"v_add_u32 {vr(vPW)}, {L_P}, v5")
A("v_lshlrev_b32 v5, 2, v4")
A(f"v_add_u32 {vr(vMR)}, {L_M}, v5")
A(f"s_lshl_b32 s{sT2}, s{sW}, 3")
A(f"v_add_u32 {vr(vMW)}, s{sT2}, {vr(vMR)}")
A(f"s_lshl_b32 s{sT2}, s{sG}, 5")
A(f"s_lshl_b32 s{sT3}, s{sW}, 2")
A(f"s_add_u32 s{sT2}, s{sT2}, s{sT3}")
A(f"s_lshl_b32 s{sT2}, s{sT2}, 12")
A(f"s_lshl_b32 s{sT3}, s{sJ}, 6")
A(f"s_add_u32 s{sT2}, s{sT2}, s{sT3}")
A(f"s_add_u32 s{sT2}, s{sT2}, {WS_H2}")
A("v_lshlrev_b32 v5, 16, v3")
A("v_lshlrev_b32 v6, 4, v2")
A("v_add_u32 v5, v5, v6")
A(f"v_add_u32 {vr(vOS)}, s{sT2}, v5")
A(f"s_lshl_b32 s{sT2}, s{sG}, 5")
A(f"s_lshl_b32 s{sT3}, s{sW}, 2")
A(f"s_add_u32 s{sT2}, s{sT2}, s{sT3}")
A(f"s_lshl_b32 s{sT2}, s{sT2}, 12")
A(f"s_lshl_b32 s{sT3}, s{sJ}, 3")
A(f"s_add_u32 s{sT2}, s{sT2}, s{sT3}")
A(f"s_add_u32 s{sT2}, s{sT2}, {WS_H2 + 2048}")
A("v_lshlrev_b32 v5, 16, v3")
A("v_lshrrev_b32 v6, 1, v0")
A("v_and_b32 v6, 3, v6")
A("v_lshlrev_b32 v6, 12, v6")
A("v_add_u32 v5, v5, v6")
A(f"v_add_u32 {vr(vML)}, s{sT2}, v5")

A("s_waitcnt vmcnt(16)")
for t in range(2):
    for kk in range(8):
        A(f"ds_read_b128 {vr(KF+(t*8+kk)*4,4)}, {vr(vKA+kk)} offset:{t*8192}")
stamp(1)

LBL("L_att_layer")
A("s_barrier")
for kk in range(8):
    A(f"ds_read_b128 {vr(QF+4*kk,4)}, {vr(vQA)} offset:{64*kk}")
A(f"v_mov_b32 {vr(vt)}, {L_MODE}")
A(f"ds_read_b32 {vr(vt+1)}, {vr(vt)}")
A("s_waitcnt lgkmcnt(0)")
A(f"v_readfirstlane_b32 s{sMODE}, {vr(vt+1)}")
for kk in range(8):
    for t in range(2):
        c = "0" if kk == 0 else vr(SA+4*t, 4)
        A(f"v_mfma_f32_16x16x32_bf16 {vr(SA+4*t,4)}, {vr(QF+4*kk,4)}, {vr(KF+(t*8+kk)*4,4)}, {c}")
nop(9)
A(f"v_cndmask_b32 {vr(vt)}, {vr(SA)}, {vr(SA+1)}, {sp(sMH1)}")
A(f"v_cndmask_b32 {vr(vt+1)}, {vr(SA+4)}, {vr(SA+5)}, {sp(sMH1)}")
A(f"v_cndmask_b32 {vr(vt)}, {vr(vt)}, {vr(vt+1)}, {sp(sMT1)}")
A(f"v_cvt_pk_bf16_f32 {vr(vt)}, {vr(vt)}, {vr(vt)}")
A(f"v_lshlrev_b32 {vr(vt)}, 16, {vr(vt)}")
A(f"v_mul_f32 {vr(vt)}, 0x3d800000, {vr(vt)}")
A(f"v_mov_b32 {vr(vt+1)}, {vr(vt)}")
allreduce("v_max_f32", [vt+1], [vt+2], [8, 4, 2, 1], swap16=False, swap32=True)
A(f"ds_write_b32 {vr(vMW)}, {vr(vt+1)}")
A("s_waitcnt lgkmcnt(0)")
A("s_barrier")
A(f"ds_read2_b32 {vr(vt+2,2)}, {vr(vMR)} offset0:0 offset1:2")
A(f"ds_read2_b32 {vr(vt+4,2)}, {vr(vMR)} offset0:4 offset1:6")
A("s_waitcnt lgkmcnt(0)")
A(f"v_max_f32 {vr(vt+2)}, {vr(vt+2)}, {vr(vt+3)}")
A(f"v_max3_f32 {vr(vt+2)}, {vr(vt+2)}, {vr(vt+4)}, {vr(vt+5)}")
A(f"v_sub_f32 {vr(vt)}, {vr(vt)}, {vr(vt+2)}")
A(f"v_mul_f32 {vr(vt)}, s{sC0}, {vr(vt)}")
A(f"v_exp_f32 {vr(vt)}, {vr(vt)}")
nop(1)
A(f"v_cvt_pk_bf16_f32 {vr(vt+1)}, {vr(vt)}, {vr(vt)}")
A(f"ds_write_b16 {vr(vPW)}, {vr(vt+1)}")
allreduce("v_add_f32", [vt], [vt+2], [8, 4, 2, 1], swap16=False, swap32=True)
A(f"ds_write_b32 {vr(vMW)}, {vr(vt)} offset:32")
A(f"s_cmp_lg_u32 s{sLAYER}, 0")
A("s_cbranch_scc1 L_att_skipv")
A("s_waitcnt vmcnt(0)")
for t in range(4):
    for ks in range(4):
        for hh in range(2):
            A(f"ds_read_b64_tr_b16 {vr(VF+(t*4+ks)*4+2*hh,2)}, {vr(vVA+t)} offset:{ks*4096+hh*512}")
stamp(2)
LBL("L_att_skipv")
A("s_waitcnt lgkmcnt(0)")
A("s_barrier")
for ks in range(4):
    A(f"ds_read_b128 {vr(PF+4*ks,4)}, {vr(vPA)} offset:{64*ks}")
A(f"ds_read2_b32 {vr(vt+2,2)}, {vr(vMR2)} offset0:0 offset1:2")
A(f"ds_read2_b32 {vr(vt+4,2)}, {vr(vMR2)} offset0:4 offset1:6")
A(f"ds_read2_b32 {vr(vt+6,2)}, {vr(vMR2)} offset0:8 offset1:10")
A(f"ds_read2_b32 {vr(vt+8,2)}, {vr(vMR2)} offset0:12 offset1:14")
A("s_waitcnt lgkmcnt(0)")
for ks in range(4):
    for t in range(4):
        c = "0" if ks == 0 else vr(OA+4*t, 4)
        A(f"v_mfma_f32_16x16x32_bf16 {vr(OA+4*t,4)}, {vr(VF+(t*4+ks)*4,4)}, {vr(PF+4*ks,4)}, {c}")
A(f"v_max_f32 {vr(vt+2)}, {vr(vt+2)}, {vr(vt+3)}")
A(f"v_max3_f32 {vr(vt+2)}, {vr(vt+2)}, {vr(vt+4)}, {vr(vt+5)}")
A(f"v_add_f32 {vr(vt+3)}, {vr(vt+6)}, {vr(vt+7)}")
A(f"v_add_f32 {vr(vt+4)}, {vr(vt+8)}, {vr(vt+9)}")
A(f"v_add_f32 {vr(vt+3)}, {vr(vt+3)}, {vr(vt+4)}")
A(f"v_bfi_b32 {vr(vt+2)}, 3, s{sTAG}, {vr(vt+2)}")
A(f"v_bfi_b32 {vr(vt+3)}, 3, s{sTAG}, {vr(vt+3)}")
for t in range(1, 4):
    A(f"v_add_u32 {vr(vt+3+t)}, {4096*t}, {vr(vOS)}")
nop(4)
for i in range(16):
    A(f"v_bfi_b32 {vr(OA+i)}, 3, s{sTAG}, {vr(OA+i)}")
A(f"s_mov_b64 exec, {sp(sM2)}")
st_local("global_store_dwordx4", [
    f"{vr(vOS)}, {vr(OA,4)}, {sp(S_WS)}",
    f"{vr(vt+4)}, {vr(OA+4,4)}, {sp(S_WS)}",
    f"{vr(vt+5)}, {vr(OA+8,4)}, {sp(S_WS)}",
    f"{vr(vt+6)}, {vr(OA+12,4)}, {sp(S_WS)}"])
A(f"s_mov_b64 exec, {sp(sM8)}")
st_local("global_store_dwordx2", [f"{vr(vML)}, {vr(vt+2,2)}, {sp(S_WS)}"])
A("s_mov_b64 exec, -1")
A(f"s_add_u32 s{sLAYER}, s{sLAYER}, 1")
A(f"s_lshl_b32 s{sTAG}, s{sTAG}, 1")
A(f"s_cmp_lt_u32 s{sLAYER}, 2")
A("s_cbranch_scc1 L_att_layer")
stamp(3)
stamp_flush(4, 0, vt, vt+1)
A("s_endpgm")

BF, AF, WO, W2, X = 16, 72, 128, 192, 224
XO, B2O, B1 = 232, 236, 255
T = 240
vZ = 80
LBL("L_ctrl")
for i in range(4):
    A(f"v_mov_b32 v{vZ+i}, 0")
for i in range(8):
    A(f"v_mov_b32 {vr(X+i)}, 0")
    A(f"v_mov_b32 {vr(AF+i)}, 0")
A("v_lshlrev_b32 v5, 4, v0")
A(f"s_lshl_b32 s{sT2}, s{sG}, 5")
A(f"s_add_u32 s{sT2}, s{sT2}, s{sJ}")
A(f"s_lshl_b32 s{sT3}, s{sT2}, 12")
A(f"s_add_u32 s{sT3}, s{sT3}, {WS_H2}")
A(f"v_add_u32 v6, s{sT3}, v5")
for i in range(3):
    A(f"global_store_dwordx4 v6, v[80:83], {sp(S_WS)} offset:{1024*i} sc1")
A(f"s_lshl_b32 s{sT3}, s{sT2}, 11")
A(f"s_add_u32 s{sT3}, s{sT3}, {WS_RS1}")
A(f"v_add_u32 v7, s{sT3}, v5")
A(f"v_add_u32 v8, {WS_RS2-WS_RS1}, v7")
for r in (7, 8):
    for i in range(2):
        A(f"global_store_dwordx4 v{r}, v[80:83], {sp(S_WS)} offset:{1024*i} sc1")
A(f"s_lshl_b32 s{sT2}, s{sG}, 11")
A(f"s_lshl_b32 s{sT3}, s{sJ}, 6")
A(f"s_add_u32 s{sT2}, s{sT2}, s{sT3}")
A(f"v_add_u32 v9, s{sT2}, v5")
A(f"v_add_u32 v10, {WS_XG1}, v9")
A(f"v_add_u32 v11, {WS_XG2}, v9")
A(f"s_lshl_b32 s{sT2}, s{sJ}, 9")
A(f"s_lshl_b32 s{sT3}, s{sG}, 6")
A(f"s_add_u32 s{sT2}, s{sT2}, s{sT3}")
A(f"s_add_u32 s{sT2}, s{sT2}, {WS_XS1}")
A(f"v_add_u32 v12, s{sT2}, v5")
A(f"v_add_u32 v13, {WS_XS2-WS_XS1}, v12")
A(f"s_mov_b64 exec, {sp(sM4)}")
for r in (9, 10, 11, 12, 13):
    A(f"global_store_dwordx4 v{r}, v[80:83], {sp(S_WS)} sc1")
A("s_mov_b64 exec, -1")
A(f"s_mov_b64 exec, {sp(sM56)}")
A(f"global_load_dwordx4 {vr(AF,4)}, v5, {sp(S_X)}")
A("s_mov_b64 exec, -1")
A("v_and_b32 v14, 3, v0")
A("v_lshlrev_b32 v14, 3, v14")
A(f"s_lshl_b32 s{sT2}, s{sJC}, 5")
A(f"v_add_u32 v14, s{sT2}, v14")
A(f"global_load_dwordx2 {vr(T,2)}, v14, {sp(S_X)}")
A("v_lshrrev_b32 v15, 1, v0")
A("v_lshlrev_b32 v15, 13, v15")
A(f"v_and_b32 {vr(T+2)}, 1, v0")
A(f"v_lshlrev_b32 {vr(T+2)}, 4, {vr(T+2)}")
A(f"v_add_u32 v15, v15, {vr(T+2)}")
A(f"s_lshl_b32 s{sT2}, s{sG}, 10")
A(f"s_lshl_b32 s{sT3}, s{sJ}, 5")
A(f"s_add_u32 s{sT2}, s{sT2}, s{sT3}")
A(f"v_add_u32 v15, s{sT2}, v15")
for i in range(14):
    A(f"s_mov_b32 m0, {L_WQ + 1024*i}")
    A(f"v_add_u32 {vr(T+2)}, {262144*i}, v15")
    A(f"global_load_lds_dwordx4 {vr(T+2)}, {sp(S_WQ)}")
A(f"s_mul_i32 s{sT2}, s{sG}, 28")
A(f"s_add_u32 s{sT2}, s{sT2}, s{sJC}")
A(f"s_lshl_b32 s{sT3}, s{sT2}, 4")
A(f"s_mov_b32 s{sC1}, 3584")
A(f"v_mul_lo_u32 v15, s{sC1}, v0")
A(f"v_add_u32 v15, s{sT3}, v15")
for i in range(7):
    A(f"s_mov_b32 m0, {L_W1 + 1024*i}")
    A(f"v_add_u32 {vr(T+2)}, {229376*i}, v15")
    A(f"global_load_lds_dwordx4 {vr(T+2)}, {sp(S_W1)}")
A(f"v_and_b32 {vr(T+3)}, 7, v0")
A(f"v_lshlrev_b32 {vr(T+3)}, 1, {vr(T+3)}")
A(f"v_add_u32 {vr(T+3)}, s{sT3}, {vr(T+3)}")
A(f"s_mul_i32 s{sT3}, s{sT2}, 7168")
A(f"v_add_u32 {vr(T+4)}, s{sT3}, v5")
A(f"s_lshl_b32 s{sT2}, s{sG}, 5")
A(f"s_add_u32 s{sT2}, s{sT2}, s{sJ}")
A(f"s_mul_i32 s{sT2}, s{sT2}, 14336")
A(f"v_add_u32 {vr(T+5)}, s{sT2}, v5")
A(f"s_mov_b64 exec, {sp(sM56)}")
for r in range(16):
    if r % 4 == 0 and r > 0:
        A(f"v_add_u32 {vr(T+5)}, 3584, {vr(T+5)}")
    A(f"global_load_dwordx4 {vr(WO+4*r,4)}, {vr(T+5)}, {sp(S_WO)} offset:{896*(r%4)}")
for r in range(8):
    if r % 4 == 0 and r > 0:
        A(f"v_add_u32 {vr(T+4)}, 3584, {vr(T+4)}")
    A(f"global_load_dwordx4 {vr(W2+4*r,4)}, {vr(T+4)}, {sp(S_W2)} offset:{896*(r%4)}")
A("s_mov_b64 exec, -1")
A(f"global_load_ushort {vr(B1)}, {vr(T+3)}, {sp(S_B1)}")
A(f"global_load_dwordx2 {vr(B2O,2)}, v14, {sp(S_B2)}")
A(f"s_getreg_b32 s{sT2}, hwreg(HW_REG_XCC_ID)")
A(f"s_and_b32 s{sT2}, s{sT2}, 15")
A(f"s_or_b32 s{sC2}, s{sT2}, 0x80")
A(f"s_lshl_b32 s{sT3}, s{sG}, 5")
A(f"s_add_u32 s{sT3}, s{sT3}, s{sJ}")
A(f"v_mov_b32 {vr(T+8)}, s{sT3}")
A(f"v_mov_b32 {vr(T+9)}, s{sC2}")
A("s_waitcnt vmcnt(49)")
A("s_mov_b64 exec, 1")
A(f"global_store_byte {vr(T+8)}, {vr(T+9)}, {sp(S_DBG)} sc1")
A("s_mov_b64 exec, -1")
A("v_lshrrev_b32 v2, 4, v0")
A("v_and_b32 v1, 15, v0")
A("v_lshrrev_b32 v3, 2, v1")
A("v_and_b32 v4, 3, v0")
A("v_lshlrev_b32 v15, 3, v2")
A("v_add_u32 v15, v15, v3")
vWQA, vW1A, vXNW, vXNR = T+10, T+11, T+12, T+13
A(f"v_lshlrev_b32 {vr(vWQA)}, 5, v15")
A("v_lshlrev_b32 v3, 3, v4")
A(f"v_add_u32 {vr(vWQA)}, {vr(vWQA)}, v3")
A(f"v_add_u32 {vr(vWQA)}, {L_WQ}, {vr(vWQA)}")
A(f"v_lshlrev_b32 {vr(vW1A)}, 4, v15")
A("v_and_b32 v3, 1, v0")
A("v_lshlrev_b32 v3, 3, v3")
A(f"v_add_u32 {vr(vW1A)}, {vr(vW1A)}, v3")
A(f"v_add_u32 {vr(vW1A)}, {L_W1}, {vr(vW1A)}")
A(f"v_add_u32 {vr(vXNW)}, {L_XN}, v5")
A(f"v_lshlrev_b32 {vr(vXNR)}, 4, v2")
A(f"v_add_u32 {vr(vXNR)}, {L_XN}, {vr(vXNR)}")
A("s_waitcnt vmcnt(34)")
stamp(1)


def load_bfrags(addr, kstep, hstep):
    for kk in range(14):
        for hh in range(2):
            A(f"ds_read_b64_tr_b16 {vr(BF+4*kk+2*hh,2)}, {vr(addr)} offset:{kk*kstep+hh*hstep}")


load_bfrags(vWQA, 1024, 128)
for i in range(4):
    A(f"v_lshlrev_b32 {vr(X+2*i)}, 16, {vr(AF+i)}")
    A(f"v_and_b32 {vr(X+2*i+1)}, 0xffff0000, {vr(AF+i)}")
for i in range(2):
    A(f"v_lshlrev_b32 {vr(XO+2*i)}, 16, {vr(T+i)}")
    A(f"v_and_b32 {vr(XO+2*i+1)}, 0xffff0000, {vr(T+i)}")


def layernorm(xin, xout, pk, t):
    s1, s2, a, b = t, t+1, t+2, t+3
    A(f"v_add_f32 {vr(s1)}, {vr(xin)}, {vr(xin+1)}")
    A(f"v_mul_f32 {vr(s2)}, {vr(xin)}, {vr(xin)}")
    A(f"v_fmac_f32 {vr(s2)}, {vr(xin+1)}, {vr(xin+1)}")
    for i in range(2, 8):
        A(f"v_add_f32 {vr(s1)}, {vr(s1)}, {vr(xin+i)}")
        A(f"v_fmac_f32 {vr(s2)}, {vr(xin+i)}, {vr(xin+i)}")
    allreduce("v_add_f32", [s1, s2], [a, b], [8, 4, 2, 1])
    A(f"v_mul_f32 {vr(s1)}, 0x3b124925, {vr(s1)}")
    A(f"v_mul_f32 {vr(s2)}, 0x3b124925, {vr(s2)}")
    A(f"v_fma_f32 {vr(s2)}, -{vr(s1)}, {vr(s1)}, {vr(s2)}")
    A(f"v_max_f32 {vr(s2)}, 0, {vr(s2)}")
    A(f"v_cvt_pk_bf16_f32 {vr(a)}, {vr(s1)}, {vr(s2)}")
    A(f"v_lshlrev_b32 {vr(s1)}, 16, {vr(a)}")
    A(f"v_and_b32 {vr(s2)}, 0xffff0000, {vr(a)}")
    A(f"v_add_f32 {vr(s2)}, 0x3727c5ac, {vr(s2)}")
    A(f"v_cvt_pk_bf16_f32 {vr(a)}, {vr(s2)}, {vr(s2)}")
    A(f"v_lshlrev_b32 {vr(s2)}, 16, {vr(a)}")
    A(f"v_sqrt_f32 {vr(s2)}, {vr(s2)}")
    nop(1)
    A(f"v_cvt_pk_bf16_f32 {vr(a)}, {vr(s2)}, {vr(s2)}")
    A(f"v_lshlrev_b32 {vr(s2)}, 16, {vr(a)}")
    A(f"v_rcp_f32 {vr(b)}, {vr(s2)}")
    d0, d1, q0, q1 = t+4, t+5, t+6, t+7
    for i in range(4):
        A(f"v_sub_f32 {vr(d0)}, {vr(xin+2*i)}, {vr(s1)}")
        A(f"v_sub_f32 {vr(d1)}, {vr(xin+2*i+1)}, {vr(s1)}")
        A(f"v_cvt_pk_bf16_f32 {vr(a)}, {vr(d0)}, {vr(d1)}")
        A(f"v_lshlrev_b32 {vr(d0)}, 16, {vr(a)}")
        A(f"v_and_b32 {vr(d1)}, 0xffff0000, {vr(a)}")
        A(f"v_mul_f32 {vr(q0)}, {vr(d0)}, {vr(b)}")
        A(f"v_mul_f32 {vr(q1)}, {vr(d1)}, {vr(b)}")
        A(f"v_fma_f32 {vr(d0)}, -{vr(q0)}, {vr(s2)}, {vr(d0)}")
        A(f"v_fma_f32 {vr(d1)}, -{vr(q1)}, {vr(s2)}, {vr(d1)}")
        A(f"v_fmac_f32 {vr(q0)}, {vr(d0)}, {vr(b)}")
        A(f"v_fmac_f32 {vr(q1)}, {vr(d1)}, {vr(b)}")
        A(f"v_cvt_pk_bf16_f32 {vr(pk+i)}, {vr(q0)}, {vr(q1)}")
        if xout is not None:
            A(f"v_lshlrev_b32 {vr(xout+2*i)}, 16, {vr(pk+i)}")
            A(f"v_and_b32 {vr(xout+2*i+1)}, 0xffff0000, {vr(pk+i)}")


def matvec(pk, acc):
    A(f"s_mov_b64 exec, {sp(sM56)}")
    A(f"ds_write_b128 {vr(vXNW)}, {vr(pk,4)}")
    A("s_mov_b64 exec, -1")
    A("s_waitcnt lgkmcnt(0)")
    for kk in range(14):
        A(f"ds_read_b128 {vr(AF+4*kk,4)}, {vr(vXNR)} offset:{64*kk}")
    for kk in range(14):
        if kk % 2 == 0:
            A(f"s_waitcnt lgkmcnt({max(0, 12-kk)})")
        c = "0" if kk == 0 else vr(acc, 4)
        A(f"v_mfma_f32_16x16x32_bf16 {vr(acc,4)}, {vr(AF+4*kk,4)}, {vr(BF+4*kk,4)}, {c}")
    nop(9)


PK = T
ACC = T+4
LNT = AF

LBL("L_ctrl_layer")
A("s_waitcnt lgkmcnt(0)")
layernorm(X, None, PK, LNT)
A(f"s_mov_b64 exec, {sp(sM56)}")
A("s_mov_b64 exec, -1")
matvec(PK, ACC)
A(f"v_cvt_pk_bf16_f32 {vr(ACC)}, {vr(ACC)}, {vr(ACC)}")
A(f"v_lshlrev_b32 {vr(ACC)}, 16, {vr(ACC)}")
A(f"v_or_b32 {vr(ACC)}, s{sTAG}, {vr(ACC)}")
stamp(2)
A(f"s_cmp_lg_u32 s{sLAYER}, 0")
A("s_cbranch_scc1 L_ctrl_noflags")
A("v_lshlrev_b32 v15, 2, v0")
A(f"s_mov_b32 s{sC1}, 0x80808080")
A(f"s_mov_b32 s{sSPIN}, 0")
LBL("L_flagpoll")
A(f"global_load_dword {vr(T+8)}, v15, {sp(S_DBG)} sc1")
A(f"s_add_u32 s{sSPIN}, s{sSPIN}, 1")
A(f"s_cmp_gt_u32 s{sSPIN}, {SPIN}")
A("s_cbranch_scc1 L_abort")
A("s_waitcnt vmcnt(0)")
A(f"v_and_b32 {vr(T+9)}, s{sC1}, {vr(T+8)}")
A(f"v_cmp_eq_u32 vcc, s{sC1}, {vr(T+9)}")
A("s_nop 1")
A("s_cmp_eq_u64 vcc, exec")
A("s_cbranch_scc0 L_flagpoll")
A(f"s_mul_i32 s{sC2}, s{sC2}, 0x01010101")
A(f"v_cmp_eq_u32 vcc, s{sC2}, {vr(T+8)}")
A(f"s_lshl_b32 s{sT2}, s{sG}, 3")
A("s_nop 1")
A(f"s_lshr_b64 {sp(sT0)}, vcc, s{sT2}")
A(f"s_and_b32 s{sT0}, s{sT0}, 0xff")
A(f"s_cmp_eq_u32 s{sT0}, 0xff")
A(f"s_cselect_b32 s{sMODE}, 1, 0")
A(f"v_mov_b32 {vr(T+8)}, {L_MODE}")
A(f"v_mov_b32 {vr(T+9)}, s{sMODE}")
A(f"ds_write_b32 {vr(T+8)}, {vr(T+9)}")
A(f"v_and_b32 {vr(B2O+3)}, 0xffff0000, {vr(B2O+1)}")
A(f"v_lshlrev_b32 {vr(B2O+2)}, 16, {vr(B2O+1)}")
A(f"v_and_b32 {vr(B2O+1)}, 0xffff0000, {vr(B2O)}")
A(f"v_lshlrev_b32 {vr(B2O)}, 16, {vr(B2O)}")
A(f"v_lshlrev_b32 {vr(B1)}, 16, {vr(B1)}")
LBL("L_ctrl_noflags")
A(f"v_mul_u32_u24 v15, 12, v0")
A(f"v_sub_u32 v15, v9, v15")
A(f"s_mov_b64 exec, {sp(sM16)}")
st_local("global_store_dword", [f"v15, {vr(ACC)}, {sp(S_WS)}"])
A("s_mov_b64 exec, -1")
A(f"s_cmp_lg_u32 s{sLAYER}, 0")
A("s_cbranch_scc1 L_ctrl_noperm")
A(f"s_mov_b32 s{sC1}, 0x05040100")
A(f"s_mov_b32 s{sC3}, 0x07060302")
for base, npairs in ((WO, 8), (W2, 4)):
    for p in range(npairs):
        for k in range(4):
            ra = base + 8*p + k
            rb = base + 8*p + 4 + k
            A(f"v_perm_b32 {vr(T+8)}, {vr(rb)}, {vr(ra)}, s{sC1}")
            A(f"v_perm_b32 {vr(rb)}, {vr(rb)}, {vr(ra)}, s{sC3}")
            A(f"v_mov_b32 {vr(ra)}, {vr(T+8)}")
LBL("L_ctrl_noperm")
A(f"s_lshl_b32 s{sT2}, s{sG}, 11")
A("v_lshlrev_b32 v15, 5, v0")
A(f"v_add_u32 v15, s{sT2}, v15")
poll([f"global_load_dwordx4 {vr(AF,4)}, v15, {sp(S_WS)}",
      f"global_load_dwordx4 {vr(AF+4,4)}, v15, {sp(S_WS)} offset:16"],
     list(range(AF, AF+8)), T+8)
A(f"s_mov_b32 s{sC3}, 0x07060302")
for i in range(4):
    A(f"v_perm_b32 {vr(AF+8+i)}, {vr(AF+2*i+1)}, {vr(AF+2*i)}, s{sC3}")
A(f"v_add_u32 v15, {L_Q}, v5")
A(f"ds_write_b128 v15, {vr(AF+8,4)}")
A("s_waitcnt lgkmcnt(0)")
stamp(3)
A("s_barrier")
load_bfrags(vW1A, 512, 64)
A("s_barrier")
A("s_waitcnt lgkmcnt(0)")
A("s_barrier")
stamp(4)
A("v_lshrrev_b32 v15, 2, v0")
A("v_lshlrev_b32 v15, 3, v15")
A("v_sub_u32 v15, v15, v5")
A("v_add_u32 v15, v15, v6")
oa, ob, mla, mlb = AF, AF+4, AF+8, AF+10
poll([f"global_load_dwordx4 {vr(oa,4)}, v6, {sp(S_WS)}",
      f"global_load_dwordx4 {vr(ob,4)}, v6, {sp(S_WS)} offset:1024",
      f"global_load_dwordx2 {vr(mla,2)}, v15, {sp(S_WS)} offset:2048",
      f"global_load_dwordx2 {vr(mlb,2)}, v15, {sp(S_WS)} offset:2176"],
     list(range(AF, AF+12)), T+8)
stamp(5)
mx, wa, wb, ls = AF+12, AF+13, AF+14, AF+15
A(f"v_max_f32 {vr(mx)}, {vr(mla)}, {vr(mlb)}")
allreduce("v_max_f32", [mx], [AF+16], [4, 8])
A(f"v_sub_f32 {vr(wa)}, {vr(mla)}, {vr(mx)}")
A(f"v_sub_f32 {vr(wb)}, {vr(mlb)}, {vr(mx)}")
A(f"v_mul_f32 {vr(wa)}, s{sC0}, {vr(wa)}")
A(f"v_mul_f32 {vr(wb)}, s{sC0}, {vr(wb)}")
A(f"v_exp_f32 {vr(wa)}, {vr(wa)}")
A(f"v_exp_f32 {vr(wb)}, {vr(wb)}")
nop(1)
A(f"v_mul_f32 {vr(ls)}, {vr(wa)}, {vr(mla+1)}")
A(f"v_fmac_f32 {vr(ls)}, {vr(wb)}, {vr(mlb+1)}")
for i in range(4):
    A(f"v_mul_f32 {vr(oa+i)}, {vr(wa)}, {vr(oa+i)}")
    A(f"v_fmac_f32 {vr(oa+i)}, {vr(wb)}, {vr(ob+i)}")
allreduce("v_add_f32", [ls, oa, oa+1, oa+2, oa+3], list(range(AF+16, AF+21)), [4, 8])
A(f"v_rcp_f32 {vr(ls)}, {vr(ls)}")
nop(1)
for i in range(4):
    A(f"v_mul_f32 {vr(oa+i)}, {vr(oa+i)}, {vr(ls)}")
A(f"v_cvt_pk_bf16_f32 {vr(ob)}, {vr(oa)}, {vr(oa+1)}")
A(f"v_cvt_pk_bf16_f32 {vr(ob+1)}, {vr(oa+2)}, {vr(oa+3)}")
dump([ob, ob+1], 0, 15)
nop(1)
for qq in range(4):
    for p in range(2):
        A(f"v_readlane_b32 s{sPK+2*qq+p}, {vr(ob+p)}, {qq}")
nop(2)
PA = AF+24


def dotpartial(base, npairs):
    for p in range(npairs):
        for c in range(8):
            w = base + 8*p + (c >> 1) + 4*(c & 1)
            if p == 0:
                A(f"v_dot2_f32_bf16 {vr(PA+c)}, s{sPK+p}, {vr(w)}, 0")
            else:
                A(f"v_dot2_f32_bf16 {vr(PA+c)}, s{sPK+p}, {vr(w)}, {vr(PA+c)}")
    nop(3)
    for c in range(8):
        A(f"v_bfi_b32 {vr(PA+c)}, 3, s{sTAG}, {vr(PA+c)}")


def publish_rs(wsbase):
    A(f"s_lshl_b32 s{sT2}, s{sG}, 16")
    A(f"s_lshl_b32 s{sT3}, s{sJ}, 6")
    A(f"s_add_u32 s{sT2}, s{sT2}, s{sT3}")
    A(f"s_add_u32 s{sT2}, s{sT2}, {wsbase}")
    A("v_lshrrev_b32 v15, 1, v0")
    A("v_lshlrev_b32 v15, 11, v15")
    A(f"v_and_b32 {vr(T+8)}, 1, v0")
    A(f"v_lshlrev_b32 {vr(T+8)}, 5, {vr(T+8)}")
    A(f"v_add3_u32 v15, v15, {vr(T+8)}, s{sT2}")
    A(f"s_mov_b64 exec, {sp(sM56)}")
    st_local("global_store_dwordx4", [f"v15, {vr(PA,4)}, {sp(S_WS)}",
                                      f"v15, {vr(PA+4,4)}, {sp(S_WS)} offset:16"])
    A("s_mov_b64 exec, -1")


dotpartial(WO, 8)
publish_rs(WS_RS1)
stamp(6)
A(f"s_cmp_ge_u32 s{sJ}, 28")
A("s_cbranch_scc1 L_ctrl_skipmlp")


def reduce_stage(vinbox, vxs, nprod, wsxs):
    a, b = AF, AF+4
    if nprod == 32:
        poll([f"global_load_dwordx4 {vr(a,4)}, v{vinbox}, {sp(S_WS)}",
              f"global_load_dwordx4 {vr(b,4)}, v{vinbox}, {sp(S_WS)} offset:1024"],
             list(range(AF, AF+8)), T+8)
    else:
        for i in range(4):
            A(f"v_mov_b32 {vr(b+i)}, s{sTAG}")
        l = newlab("poll")
        A(f"s_mov_b32 s{sSPIN}, 0")
        LBL(l)
        A(f"global_load_dwordx4 {vr(a,4)}, v{vinbox}, {sp(S_WS)} sc1")
        A("s_mov_b32 exec_hi, 0xffff")
        A(f"global_load_dwordx4 {vr(b,4)}, v{vinbox}, {sp(S_WS)} offset:1024 sc1")
        A("s_mov_b64 exec, -1")
        A(f"s_add_u32 s{sSPIN}, s{sSPIN}, 1")
        A(f"s_cmp_gt_u32 s{sSPIN}, {SPIN}")
        A("s_cbranch_scc1 L_abort")
        A("s_waitcnt vmcnt(0)")
        A(f"v_and_b32 {vr(T+8)}, s{sTAG}, {vr(a)}")
        for r in range(AF+1, AF+8):
            A(f"v_and_b32 {vr(T+8)}, {vr(T+8)}, {vr(r)}")
        A(f"v_cmp_ne_u32 vcc, 0, {vr(T+8)}")
        A("s_nop 1")
        A("s_cmp_eq_u64 vcc, exec")
        A(f"s_cbranch_scc0 {l}")
    for i in range(4):
        A(f"v_add_f32 {vr(a+i)}, {vr(a+i)}, {vr(b+i)}")
    allreduce("v_add_f32", [a, a+1, a+2, a+3], list(range(AF+8, AF+12)), [4, 8])
    for i in range(4):
        A(f"v_bfi_b32 {vr(a+i)}, 3, s{sTAG}, {vr(a+i)}")
    A(f"s_mov_b64 exec, {sp(sM4)}")
    A(f"global_store_dwordx4 v{vxs}, {vr(a,4)}, {sp(S_WS)} sc1")
    A("s_mov_b64 exec, -1")
    A(f"s_lshl_b32 s{sT2}, s{sJ}, 9")
    A(f"s_add_u32 s{sT2}, s{sT2}, {wsxs}")
    A(f"v_add_u32 v15, s{sT2}, v5")
    for i in range(4):
        A(f"v_mov_b32 {vr(b+i)}, 0")
    A(f"s_mov_b64 exec, {sp(sM32)}")
    poll([f"global_load_dwordx4 {vr(b,4)}, v15, {sp(S_WS)}"], list(range(b, b+4)), T+8)
    A("s_mov_b64 exec, -1")
    allreduce("v_add_f32", [b, b+1, b+2, b+3], list(range(AF+8, AF+12)), [4, 8], swap16=True, swap32=False)
    return b


def bf16round(regs, tmp):
    for i in range(0, len(regs), 2):
        A(f"v_cvt_pk_bf16_f32 {vr(tmp)}, {vr(regs[i])}, {vr(regs[i+1])}")
        A(f"v_lshlrev_b32 {vr(regs[i])}, 16, {vr(tmp)}")
        A(f"v_and_b32 {vr(regs[i+1])}, 0xffff0000, {vr(tmp)}")


def gather_x(wsxg):
    A(f"s_lshl_b32 s{sT2}, s{sG}, 11")
    A(f"s_add_u32 s{sT2}, s{sT2}, {wsxg}")
    A("v_lshlrev_b32 v15, 5, v0")
    A(f"v_add_u32 v15, s{sT2}, v15")
    A(f"s_mov_b64 exec, {sp(sM56)}")
    poll([f"global_load_dwordx4 {vr(X,4)}, v15, {sp(S_WS)}",
          f"global_load_dwordx4 {vr(X+4,4)}, v15, {sp(S_WS)} offset:16"],
         list(range(X, X+8)), T+8)
    for i in range(8):
        A(f"v_and_b32 {vr(X+i)}, 0xffff0000, {vr(X+i)}")
    A("s_mov_b64 exec, -1")


r = reduce_stage(7, 12, 32, WS_XS1)
bf16round([r, r+1, r+2, r+3], T+8)
for i in range(4):
    A(f"v_add_f32 {vr(XO+i)}, {vr(XO+i)}, {vr(r+i)}")
bf16round([XO, XO+1, XO+2, XO+3], T+8)
for i in range(4):
    A(f"v_or_b32 {vr(r+i)}, s{sTAG}, {vr(XO+i)}")
A(f"s_mov_b64 exec, {sp(sM4)}")
st_local("global_store_dwordx4", [f"v10, {vr(r,4)}, {sp(S_WS)}"])
A("s_mov_b64 exec, -1")
stamp(7)
gather_x(WS_XG1)
dump(list(range(X, X+8)), 2, 15)
Y = AF+16
layernorm(X, Y, PK, LNT)
A(f"s_mov_b64 exec, {sp(sM56)}")
A("s_not_b64 exec, exec")
for i in range(8):
    A(f"v_mov_b32 {vr(Y+i)}, 0")
A("s_mov_b64 exec, -1")
layernorm(Y, None, PK, LNT)
matvec(PK, ACC)
h = ACC
A(f"v_cvt_pk_bf16_f32 {vr(h)}, {vr(h)}, {vr(h)}")
A(f"v_lshlrev_b32 {vr(h)}, 16, {vr(h)}")
A(f"v_add_f32 {vr(h)}, {vr(h)}, {vr(B1)}")
A(f"v_cvt_pk_bf16_f32 {vr(h)}, {vr(h)}, {vr(h)}")
A(f"v_lshlrev_b32 {vr(h)}, 16, {vr(h)}")
A(f"v_mul_f32 {vr(h+1)}, {vr(h)}, {vr(h)}")
A(f"v_mul_f32 {vr(h+1)}, {vr(h+1)}, {vr(h)}")
A(f"v_mov_b32 {vr(h+2)}, {vr(h)}")
A(f"v_fmac_f32 {vr(h+2)}, 0x3d372713, {vr(h+1)}")
A(f"v_mul_f32 {vr(h+2)}, 0x40135761, {vr(h+2)}")
A(f"v_exp_f32 {vr(h+2)}, {vr(h+2)}")
nop(1)
A(f"v_add_f32 {vr(h+2)}, 1.0, {vr(h+2)}")
A(f"v_rcp_f32 {vr(h+2)}, {vr(h+2)}")
nop(1)
A(f"v_sub_f32 {vr(h+2)}, 1.0, {vr(h+2)}")
A(f"v_mul_f32 {vr(h)}, {vr(h)}, {vr(h+2)}")
A(f"v_cvt_pk_bf16_f32 {vr(h)}, {vr(h)}, {vr(h)}")
dump([h], 12, 15)
nop(1)
for p in range(4):
    A(f"v_readlane_b32 s{sRL}, {vr(h)}, {2*p}")
    A(f"v_readlane_b32 s{sRL+1}, {vr(h)}, {2*p+1}")
    nop(1)
    A(f"s_pack_ll_b32_b16 s{sPK+p}, s{sRL}, s{sRL+1}")
nop(2)
dotpartial(W2, 4)
publish_rs(WS_RS2)
stamp(8)
r = reduce_stage(8, 13, 28, WS_XS2)
bf16round([r, r+1, r+2, r+3], T+8)
for i in range(4):
    A(f"v_add_f32 {vr(r+i)}, {vr(r+i)}, {vr(B2O+i)}")
bf16round([r, r+1, r+2, r+3], T+8)
for i in range(4):
    A(f"v_add_f32 {vr(XO+i)}, {vr(XO+i)}, {vr(r+i)}")
bf16round([XO, XO+1, XO+2, XO+3], T+8)
A(f"s_cmp_lg_u32 s{sLAYER}, 0")
A("s_cbranch_scc1 L_ctrl_final")
for i in range(4):
    A(f"v_or_b32 {vr(r+i)}, s{sTAG}, {vr(XO+i)}")
A(f"s_mov_b64 exec, {sp(sM4)}")
st_local("global_store_dwordx4", [f"v11, {vr(r,4)}, {sp(S_WS)}"])
A("s_mov_b64 exec, -1")
LBL("L_ctrl_skipmlp")
A(f"s_cmp_lg_u32 s{sLAYER}, 0")
A("s_cbranch_scc1 L_ctrl_done")
stamp(9)
load_bfrags(vWQA, 1024, 128)
gather_x(WS_XG2)
dump(list(range(X, X+8)), 14, 15)
stamp(10)
stamp_flush(11, 0, T+8, T+9)
A(f"s_mov_b32 s{sLAYER}, 1")
A(f"s_mov_b32 s{sTAG}, 2")
A("s_branch L_ctrl_layer")

LBL("L_ctrl_final")
A(f"s_cmp_lg_u32 s{sG}, 0")
A("s_cbranch_scc1 L_ctrl_done")
A(f"v_cvt_pk_bf16_f32 {vr(T)}, {vr(XO)}, {vr(XO+1)}")
A(f"v_cvt_pk_bf16_f32 {vr(T+1)}, {vr(XO+2)}, {vr(XO+3)}")
A(f"s_mov_b64 exec, {sp(sM4)}")
A(f"global_store_dwordx2 v14, {vr(T,2)}, {sp(S_OUT)}")
A("s_mov_b64 exec, -1")
LBL("L_ctrl_done")
stamp(9)
stamp_flush(11, 16, T+8, T+9)
LBL("L_abort")
LBL("L_end")
A("s_endpgm")

lines.append('.section .rodata,"a"')
lines.append(".p2align 6")
lines.append(f".amdhsa_kernel {NAME}_kernel")
lines.append("  .amdhsa_next_free_vgpr 256")
lines.append("  .amdhsa_next_free_sgpr 102")
lines.append("  .amdhsa_accum_offset 256")
lines.append("  .amdhsa_group_segment_fixed_size 0")
lines.append("  .amdhsa_kernarg_size 104")
lines.append("  .amdhsa_user_sgpr_count 2")
lines.append("  .amdhsa_user_sgpr_kernarg_segment_ptr 1")
lines.append("  .amdhsa_system_sgpr_workgroup_id_x 1")
lines.append(".end_amdhsa_kernel")
open(OUT, "w").write("\n".join(lines) + "\n")
print("wrote", OUT, len(lines), "lines")
```

```python
import sys

NAME = "interleave_layers__sliding_block_cached__mixer_channel_mlp__decode"
DEBUG = int(sys.argv[1]) if len(sys.argv) > 1 else 0
STAMP = int(sys.argv[2]) if len(sys.argv) > 2 else 0
import os
KVPOL = os.environ.get("KVPOL", "nt")
W2POL = os.environ.get("W2POL", "nt")
WPOL = os.environ.get("WPOL", "")
WIN = int(os.environ.get("WIN", "8"))
OUT = sys.argv[3] if len(sys.argv) > 3 else f"cdna_kernels/{NAME}.s"

WS_Q = 0x000000
WS_XG1 = 0x010000
WS_XG2 = 0x020000
WS_XS1 = 0x030000
WS_XS2 = 0x040000
WS_HF = 0x050000
WS_HS = 0x051000
WS_HZ = 0x052000
WS_XR = 0x053000
WS_H2 = 0x100000
WS_RS1 = 0x200000
WS_RS2 = 0x300000
WS_DBG = 0x400000
WS_STAMP = 0x800000

L_WQ = 131072
L_W1 = L_WQ + 14336
L_XN = L_W1 + 7168
L_Q = L_XN + 1024
L_P = L_Q + 1024
L_M = L_P + 512
L_L = L_M + 32
L_MODE = L_L + 32
L_NONCE = L_MODE + 8
L_REL = L_NONCE + 8
LDS_BYTES = 155648

SPIN = 400000
LOG2E = 0x3fb8aa3b

lines = []
lab_id = [0]


def A(s):
    lines.append("    " + s)


def LBL(s):
    lines.append(s + ":")


def newlab(p):
    lab_id[0] += 1
    return f"L_{p}_{lab_id[0]}"


def vr(a, n=1):
    return f"v{a}" if n == 1 else f"v[{a}:{a+n-1}]"


def nop(n):
    while n > 0:
        k = min(n, 16)
        A(f"s_nop {k-1}")
        n -= k


S_X, S_K, S_V, S_WQ, S_WO, S_W1, S_B1, S_W2, S_B2, S_OUT, S_DBG, S_WS = 4, 6, 8, 10, 12, 16, 18, 20, 22, 24, 26, 28
sG, sJ, sW, sTAG, sMODE, sSPIN = 30, 31, 32, 33, 34, 35
sEX = 36
sT0 = 38
sT2 = 40
sT3 = 41
sVB = 42
sLB = 44
sJC = 45
sPK = 48
sM56 = 56
sM4 = 58
sM32 = 60
sMH1 = 62
sMT1 = 64
sM2 = 66
sM8 = 68
sM16 = 70
sC0 = 72
sC1 = 73
sC2 = 74
sC3 = 3
sLAYER = 76
sXCC = 79
sREL = 75
sNL = 46
sNH = 47
TMO = 300
sST = 80
sRL = 77


def sp(a):
    return f"s[{a}:{a+1}]"


def st_local(op, rest):
    lf = newlab("f")
    le = newlab("e")
    A(f"s_cmp_eq_u32 s{sMODE}, 1")
    A(f"s_cbranch_scc1 {lf}")
    for r in rest:
        A(f"{op} {r} sc1")
    A(f"s_branch {le}")
    LBL(lf)
    for r in rest:
        A(f"{op} {r}")
    LBL(le)


def poll(loads, regs, tmp, abort="L_abort"):
    l = newlab("poll")
    ld = newlab("pd")
    A(f"s_mov_b32 s{sSPIN}, 0")
    LBL(l)
    for x in loads:
        A(f"{x} sc1")
    A(f"s_add_u32 s{sSPIN}, s{sSPIN}, 1")
    A(f"s_cmp_gt_u32 s{sSPIN}, {SPIN}")
    A(f"s_cbranch_scc1 {abort}")
    A("s_waitcnt vmcnt(0)")
    A(f"v_and_b32 {vr(tmp)}, s{sTAG}, {vr(regs[0])}")
    for r in regs[1:]:
        A(f"v_and_b32 {vr(tmp)}, {vr(tmp)}, {vr(r)}")
    A(f"v_cmp_ne_u32 vcc, 0, {vr(tmp)}")
    A("s_nop 1")
    A("s_cmp_eq_u64 vcc, exec")
    A(f"s_cbranch_scc0 {l}")
    LBL(ld)


def dpp(op, d, s, ror):
    A(f"{op}_dpp {vr(d)}, {vr(s)}, {vr(d)} row_ror:{ror} row_mask:0xf bank_mask:0xf")


def allreduce(op, regs, tmps, rors, swap16=True, swap32=True):
    n = len(regs)
    nop(2)
    for ro in rors:
        for r in regs:
            dpp(op, r, r, ro)
        if n < 3:
            nop(3 - n)
    for which, en in (("16", swap16), ("32", swap32)):
        if not en:
            continue
        for r, t in zip(regs, tmps):
            A(f"v_mov_b32 {vr(t)}, {vr(r)}")
        nop(2)
        for r, t in zip(regs, tmps):
            A(f"v_permlane{which}_swap_b32 {vr(r)}, {vr(t)}")
        nop(1)
        for r, t in zip(regs, tmps):
            A(f"{op} {vr(r)}, {vr(r)}, {vr(t)}")


dbg_slot = [0]


def dump(regs, slot, atmp):
    if not DEBUG:
        return
    A(f"s_lshl_b32 s{sT2}, s2, 14")
    A(f"s_add_u32 s{sT2}, s{sT2}, {WS_DBG + slot*256}")
    A(f"v_lshlrev_b32 {vr(atmp)}, 2, v0")
    A(f"v_add_u32 {vr(atmp)}, s{sT2}, {vr(atmp)}")
    for i, r in enumerate(regs):
        A(f"global_store_dword {vr(atmp)}, {vr(r)}, {sp(S_WS)} offset:{i*256}")


stamp_n = [0]


def stamp(idx):
    if not STAMP:
        return
    A(f"s_memrealtime s[{sST+2*idx}:{sST+2*idx+1}]")


def stamp_flush(n, base_slot, vt, vt2):
    if not STAMP:
        return
    A("s_waitcnt lgkmcnt(0)")
    A(f"s_lshl_b32 s{sT2}, s2, 3")
    A(f"s_add_u32 s{sT2}, s{sT2}, s{sW}")
    A(f"s_lshl_b32 s{sT2}, s{sT2}, 8")
    A(f"s_add_u32 s{sT2}, s{sT2}, {WS_STAMP + base_slot*4}")
    A(f"v_mov_b32 {vr(vt)}, s{sT2}")
    for i in range(n):
        A(f"v_mov_b32 {vr(vt2)}, s{sST+2*i}")
        A(f"global_store_dword {vr(vt)}, {vr(vt2)}, {sp(S_WS)} offset:{4*i}")
        nop(1)


hdr = open(f"cdna_kernels/{NAME}.s.ref").read().split("\n")
head = []
for h in hdr:
    if h.startswith("; @launch"):
        head.append(f"; @launch grid=(256,1,1) block=(320,1,1) lds={LDS_BYTES}")
        break
    head.append(h)
lines.extend(head)
lines.append('.amdgcn_target "amdgcn-amd-amdhsa--gfx950"')
lines.append(".text")
lines.append(f".globl {NAME}_kernel")
lines.append(".p2align 8")
lines.append(f".type {NAME}_kernel,@function")
LBL(f"{NAME}_kernel")

A("s_cmp_ge_u32 s2, 256")
A("s_cbranch_scc1 L_end")
stamp(0)
A("s_load_dwordx16 s[4:19], s[0:1], 0")
A("s_load_dwordx8 s[20:27], s[0:1], 64")
A("s_load_dwordx2 s[28:29], s[0:1], 96")
A(f"s_and_b32 s{sG}, s2, 7")
A(f"s_lshr_b32 s{sJ}, s2, 3")
A(f"s_min_u32 s{sJC}, s{sJ}, 27")
A("v_lshrrev_b32 v1, 6, v0")
A("v_and_b32 v0, 63, v0")
A("s_nop 1")
A(f"v_readfirstlane_b32 s{sW}, v1")
A(f"s_mov_b32 s{sTAG}, 1")
A(f"s_mov_b32 s{sMODE}, 0")
A(f"s_mov_b32 s{sLAYER}, 0")
A(f"s_mov_b32 s{sM56}, -1")
A(f"s_mov_b32 s{sM56+1}, 0x00ffffff")
A(f"s_mov_b32 s{sM4}, 15")
A(f"s_mov_b32 s{sM4+1}, 0")
A(f"s_mov_b32 s{sM32}, -1")
A(f"s_mov_b32 s{sM32+1}, 0")
A(f"s_mov_b32 s{sMH1}, 0xffff0000")
A(f"s_mov_b32 s{sMH1+1}, 0xffff0000")
A(f"s_mov_b32 s{sMT1}, 0")
A(f"s_mov_b32 s{sMT1+1}, -1")
A(f"s_mov_b32 s{sM2}, 0x00030003")
A(f"s_mov_b32 s{sM2+1}, 0x00030003")
A(f"s_mov_b32 s{sM8}, 0xff")
A(f"s_mov_b32 s{sM8+1}, 0")
A(f"s_mov_b32 s{sM16}, 0xffff")
A(f"s_mov_b32 s{sM16+1}, 0")
A(f"s_mov_b32 s{sC0}, {LOG2E:#x}")
A("s_waitcnt lgkmcnt(0)")
A(f"s_cmp_eq_u32 s{sW}, 4")
A("s_cbranch_scc1 L_ctrl")

KF, VF, QF, SA, PF, OA = 16, 80, 144, 176, 184, 200
vKA = 216
vVA = 224
vQA, vPA, vPW, vMW, vMR, vMR2, vOS, vML = 228, 229, 230, 231, 232, 233, 234, 235
vt = 236

A(f"s_lshl_b32 s{sT2}, s{sG}, 25")
A(f"s_add_u32 s{sT2}, s{sT2}, 31457280")
A(f"s_lshl_b32 s{sT3}, s{sJ}, 16")
A(f"s_add_u32 s{sT2}, s{sT2}, s{sT3}")
A(f"s_lshl_b32 s{sT3}, s{sW}, 14")
A(f"s_add_u32 s{sT3}, s{sT2}, s{sT3}")
A(f"s_add_u32 s{sT0}, s{S_K}, s{sT3}")
A(f"s_addc_u32 s{sT0+1}, s{S_K+1}, 0")
A(f"s_lshl_b32 s{sT3}, s{sW}, 7")
A(f"s_add_u32 s{sT3}, s{sT2}, s{sT3}")
A(f"s_add_u32 s{sVB}, s{S_V}, s{sT3}")
A(f"s_addc_u32 s{sVB+1}, s{S_V+1}, 0")
A(f"s_lshl_b32 s{sLB}, s{sW}, 15")
A(f"s_lshl_b32 s{sT2}, s{sG}, 4")
A(f"v_mov_b32 v10, s{sT2}")
A("v_mov_b32 v8, 0")
A("v_mov_b32 v9, 0")
A(f"s_or_b32 s{sT2}, s{sJ}, s{sW}")
A(f"s_cmp_lg_u32 s{sT2}, 0")
A("s_cbranch_scc1 L_att_nolead")
A(f"s_memrealtime s[{sPK}:{sPK+1}]")
A("s_waitcnt lgkmcnt(0)")
A(f"s_and_b32 s{sPK+2}, s{sPK}, 0xfffffff0")
A(f"s_or_b32 s{sPK+3}, s{sPK+1}, 0x80000000")
A(f"v_mov_b32 v8, s{sPK+2}")
A(f"v_mov_b32 v9, s{sPK+3}")
A(f"s_lshl_b32 s{sT2}, s{sG}, 4")
A(f"v_mov_b32 v10, s{sT2}")
A("s_mov_b64 exec, 1")
A(f"global_store_dwordx2 v10, v[8:9], {sp(S_DBG)}")
A("s_mov_b64 exec, -1")
LBL("L_att_nolead")
A("s_barrier")
A(f"v_mov_b32 v11, {L_REL}")
A(f"s_mov_b32 s{sREL}, 0")


def throttle():
    l = newlab("go")
    A(f"s_cmp_lg_u32 s{sREL}, 0")
    A(f"s_cbranch_scc1 {l}")
    A("ds_read_b32 v12, v11")
    A("s_waitcnt lgkmcnt(0)")
    A(f"v_readfirstlane_b32 s{sREL}, v12")
    A(f"s_waitcnt vmcnt({WIN-1})")
    LBL(l)


A("v_lshrrev_b32 v1, 5, v0")
A("v_and_b32 v2, 31, v0")
A("v_xor_b32 v2, v2, v1")
A("v_lshlrev_b32 v2, 4, v2")
A("v_lshlrev_b32 v1, 9, v1")
A("v_or_b32 v2, v2, v1")
for i in range(16):
    blk = i >> 2
    if (i & 3) == 0:
        A(f"s_add_u32 m0, s{sLB}, {4096*blk}")
    c = ((2 * i) & 14) * 16
    A(f"v_xor_b32 v3, {c}, v2")
    A(f"v_add_u32 v3, {4096*blk}, v3")
    if i >= WIN:
        throttle()
    A(f"global_load_lds_dwordx4 v3, {sp(sT0)} offset:{1024*(i&3)} {KVPOL}")
A("v_lshrrev_b32 v1, 3, v0")
A("v_and_b32 v4, 7, v0")
A("v_lshrrev_b32 v5, 1, v4")
A("v_lshrrev_b32 v6, 1, v1")
A("v_and_b32 v6, 1, v6")
A("v_xor_b32 v5, v5, v6")
A("v_lshlrev_b32 v5, 5, v5")
A("v_and_b32 v4, 1, v4")
A("v_lshlrev_b32 v4, 4, v4")
A("v_or_b32 v5, v5, v4")
A("v_lshlrev_b32 v1, 9, v1")
A("v_or_b32 v5, v5, v1")
A("v_xor_b32 v6, 64, v5")
for i in range(16):
    A(f"s_add_u32 m0, s{sLB}, {16384 + 1024*i}")
    A(f"v_add_u32 v3, {4096*i}, v{5 + (i & 1)}")
    if 16 + i >= WIN:
        throttle()
    A(f"global_load_lds_dwordx4 v3, {sp(sVB)} {KVPOL}")
A(f"s_cmp_lg_u32 s{sW}, 0")
A("s_cbranch_scc1 L_att_nox")
A(f"s_cmp_lg_u32 s{sJ}, 0")
A("s_cbranch_scc1 L_att_nolead2")
A("s_mov_b64 exec, 1")
A(f"global_store_dwordx2 v10, v[8:9], {sp(S_DBG)} offset:128 sc1")
A("s_mov_b64 exec, -1")
LBL("L_att_nolead2")
for i in range(4):
    A(f"v_mov_b32 v{12+i}, 0")
A(f"s_lshl_b32 s{sT2}, s{sJ}, 9")
A(f"s_lshl_b32 s{sT3}, s{sG}, 6")
A(f"s_add_u32 s{sT2}, s{sT2}, s{sT3}")
A(f"s_add_u32 s{sT2}, s{sT2}, {WS_XS1}")
A("v_lshlrev_b32 v11, 4, v0")
A(f"v_add_u32 v11, s{sT2}, v11")
A(f"v_add_u32 v7, {WS_XS2-WS_XS1}, v11")
A(f"s_mov_b64 exec, {sp(sM4)}")
A(f"global_store_dwordx4 v11, v[12:15], {sp(S_WS)} sc1")
A(f"global_store_dwordx4 v7, v[12:15], {sp(S_WS)} sc1")
A("s_mov_b64 exec, -1")
LBL("L_att_nox")
A("v_and_b32 v1, 15, v0")
A("v_lshrrev_b32 v2, 4, v0")
A("v_xor_b32 v3, v2, v1")
A("v_lshlrev_b32 v3, 4, v3")
A("v_lshlrev_b32 v4, 9, v1")
A("v_or_b32 v3, v3, v4")
A(f"v_add_u32 v3, s{sLB}, v3")
for kk in range(8):
    A(f"v_xor_b32 {vr(vKA+kk)}, {64*kk}, v3")
A("v_lshrrev_b32 v3, 2, v1")
A("v_and_b32 v4, 3, v0")
A("v_lshrrev_b32 v5, 1, v3")
A("v_and_b32 v5, 1, v5")
A("v_and_b32 v6, 1, v2")
A("v_lshlrev_b32 v6, 1, v6")
A("v_or_b32 v5, v5, v6")
A("v_lshlrev_b32 v6, 3, v2")
A("v_add_u32 v6, v6, v3")
A("v_lshlrev_b32 v6, 7, v6")
A("v_lshlrev_b32 v4, 3, v4")
A("v_add_u32 v6, v6, v4")
A(f"v_add_u32 v6, s{sLB}, v6")
A("v_add_u32 v6, 16384, v6")
for t in range(4):
    A(f"v_xor_b32 v7, {t}, v5")
    A("v_lshlrev_b32 v7, 5, v7")
    A(f"v_add_u32 {vr(vVA+t)}, v6, v7")
A("v_and_b32 v3, 1, v0")
A("v_lshlrev_b32 v4, 4, v2")
A("v_lshlrev_b32 v5, 9, v3")
A("v_add_u32 v5, v5, v4")
A(f"v_add_u32 {vr(vQA)}, {L_Q}, v5")
A("v_lshlrev_b32 v5, 8, v3")
A("v_add_u32 v5, v5, v4")
A(f"v_add_u32 {vr(vPA)}, {L_P}, v5")
A("v_lshlrev_b32 v5, 2, v3")
A(f"v_add_u32 {vr(vMR2)}, {L_M}, v5")
A("v_and_b32 v4, 1, v2")
A("v_lshlrev_b32 v5, 8, v4")
A("v_lshrrev_b32 v6, 1, v2")
A("v_lshlrev_b32 v6, 4, v6")
A("v_add_u32 v6, v6, v1")
A(f"s_lshl_b32 s{sT2}, s{sW}, 5")
A(f"v_add_u32 v6, s{sT2}, v6")
A("v_lshlrev_b32 v6, 1, v6")
A("v_add_u32 v5, v5, v6")
A(f"v_add_u32 {vr(vPW)}, {L_P}, v5")
A("v_lshlrev_b32 v5, 2, v4")
A(f"v_add_u32 {vr(vMR)}, {L_M}, v5")
A(f"s_lshl_b32 s{sT2}, s{sW}, 3")
A(f"v_add_u32 {vr(vMW)}, s{sT2}, {vr(vMR)}")
A(f"s_lshl_b32 s{sT2}, s{sG}, 5")
A(f"s_lshl_b32 s{sT3}, s{sW}, 2")
A(f"s_add_u32 s{sT2}, s{sT2}, s{sT3}")
A(f"s_lshl_b32 s{sT2}, s{sT2}, 12")
A(f"s_lshl_b32 s{sT3}, s{sJ}, 6")
A(f"s_add_u32 s{sT2}, s{sT2}, s{sT3}")
A(f"s_add_u32 s{sT2}, s{sT2}, {WS_H2}")
A("v_lshlrev_b32 v5, 16, v3")
A("v_lshlrev_b32 v6, 4, v2")
A("v_add_u32 v5, v5, v6")
A(f"v_add_u32 {vr(vOS)}, s{sT2}, v5")
A(f"s_lshl_b32 s{sT2}, s{sG}, 5")
A(f"s_lshl_b32 s{sT3}, s{sW}, 2")
A(f"s_add_u32 s{sT2}, s{sT2}, s{sT3}")
A(f"s_lshl_b32 s{sT2}, s{sT2}, 12")
A(f"s_lshl_b32 s{sT3}, s{sJ}, 3")
A(f"s_add_u32 s{sT2}, s{sT2}, s{sT3}")
A(f"s_add_u32 s{sT2}, s{sT2}, {WS_H2 + 2048}")
A("v_lshlrev_b32 v5, 16, v3")
A("v_lshrrev_b32 v6, 1, v0")
A("v_and_b32 v6, 3, v6")
A("v_lshlrev_b32 v6, 12, v6")
A("v_add_u32 v5, v5, v6")
A(f"v_add_u32 {vr(vML)}, s{sT2}, v5")

A(f"s_cmp_eq_u32 s{sW}, 0")
A("s_cbranch_scc1 L_att_kw0")
A("s_waitcnt vmcnt(16)")
A("s_branch L_att_kwd")
LBL("L_att_kw0")
A(f"s_cmp_eq_u32 s{sJ}, 0")
A("s_cbranch_scc1 L_att_kw1")
A("s_waitcnt vmcnt(18)")
A("s_branch L_att_kwd")
LBL("L_att_kw1")
A("s_waitcnt vmcnt(19)")
LBL("L_att_kwd")
for t in range(2):
    for kk in range(8):
        A(f"ds_read_b128 {vr(KF+(t*8+kk)*4,4)}, {vr(vKA+kk)} offset:{t*8192}")
stamp(1)
A("s_waitcnt lgkmcnt(0)")
A("v_lshlrev_b32 v1, 4, v0")
A(f"s_lshl_b32 s{sT2}, s{sG}, 5")
A(f"s_add_u32 s{sT2}, s{sT2}, s{sJ}")
A(f"s_mul_i32 s{sT2}, s{sT2}, 14336")
A(f"s_mul_i32 s{sT3}, s{sW}, 896")
A(f"s_add_u32 s{sT2}, s{sT2}, s{sT3}")
A(f"v_add_u32 v2, s{sT2}, v1")
A(f"s_mul_i32 s{sT2}, s{sG}, 28")
A(f"s_add_u32 s{sT2}, s{sT2}, s{sJC}")
A(f"s_mul_i32 s{sC1}, s{sT2}, 7168")
A(f"s_add_u32 s{sC1}, s{sC1}, s{sT3}")
A(f"v_add_u32 v4, s{sC1}, v1")
A(f"s_mov_b64 exec, {sp(sM56)}")
for i in range(4):
    A(f"s_add_u32 m0, s{sLB}, {1024*i}")
    A(f"v_add_u32 v3, {3584*i}, v2")
    A(f"global_load_lds_dwordx4 v3, {sp(S_WO)} {W2POL}")
for i in range(2):
    A(f"s_add_u32 m0, s{sLB}, {1024*(4+i)}")
    A(f"v_add_u32 v3, {3584*i}, v4")
    A(f"global_load_lds_dwordx4 v3, {sp(S_W2)} {W2POL}")
A("s_mov_b64 exec, -1")
A(f"s_lshl_b32 s{sT3}, s{sT2}, 4")
A(f"s_mov_b32 s{sC1}, 3584")
A(f"v_mul_lo_u32 v2, s{sC1}, v0")
A(f"s_mul_i32 s{sC1}, s{sW}, 229376")
A(f"s_add_u32 s{sT3}, s{sT3}, s{sC1}")
A(f"v_add_u32 v2, s{sT3}, v2")
A(f"s_lshl_b32 s{sT2}, s{sW}, 10")
A(f"s_add_u32 m0, s{sT2}, {L_W1}")
A("s_nop 0")
A(f"global_load_lds_dwordx4 v2, {sp(S_W1)} {WPOL}")
A(f"s_cmp_eq_u32 s{sW}, 3")
A("s_cbranch_scc1 L_att_now1")
A(f"s_add_u32 m0, s{sT2}, {L_W1 + 4096}")
A(f"v_add_u32 v2, {229376*4}, v2")
A(f"global_load_lds_dwordx4 v2, {sp(S_W1)} {WPOL}")
LBL("L_att_now1")
if STAMP >= 2:
    A("s_waitcnt vmcnt(0)")
    stamp(4)
if STAMP >= 3:
    stamp_flush(5, 0, vt, vt+1)
    A("s_endpgm")

LBL("L_att_layer")
A("s_barrier")
for kk in range(8):
    A(f"ds_read_b128 {vr(QF+4*kk,4)}, {vr(vQA)} offset:{64*kk}")
A(f"v_mov_b32 {vr(vt)}, {L_MODE}")
A(f"ds_read_b32 {vr(vt+1)}, {vr(vt)}")
A("s_waitcnt lgkmcnt(0)")
A(f"v_readfirstlane_b32 s{sMODE}, {vr(vt+1)}")
for kk in range(8):
    for t in range(2):
        c = "0" if kk == 0 else vr(SA+4*t, 4)
        A(f"v_mfma_f32_16x16x32_bf16 {vr(SA+4*t,4)}, {vr(QF+4*kk,4)}, {vr(KF+(t*8+kk)*4,4)}, {c}")
nop(9)
A(f"v_cndmask_b32 {vr(vt)}, {vr(SA)}, {vr(SA+1)}, {sp(sMH1)}")
A(f"v_cndmask_b32 {vr(vt+1)}, {vr(SA+4)}, {vr(SA+5)}, {sp(sMH1)}")
A(f"v_cndmask_b32 {vr(vt)}, {vr(vt)}, {vr(vt+1)}, {sp(sMT1)}")
A(f"v_cvt_pk_bf16_f32 {vr(vt)}, {vr(vt)}, {vr(vt)}")
A(f"v_lshlrev_b32 {vr(vt)}, 16, {vr(vt)}")
A(f"v_mul_f32 {vr(vt)}, 0x3d800000, {vr(vt)}")
A(f"v_mov_b32 {vr(vt+1)}, {vr(vt)}")
allreduce("v_max_f32", [vt+1], [vt+2], [8, 4, 2, 1], swap16=False, swap32=True)
A(f"ds_write_b32 {vr(vMW)}, {vr(vt+1)}")
A("s_waitcnt lgkmcnt(0)")
A("s_barrier")
A(f"ds_read2_b32 {vr(vt+2,2)}, {vr(vMR)} offset0:0 offset1:2")
A(f"ds_read2_b32 {vr(vt+4,2)}, {vr(vMR)} offset0:4 offset1:6")
A("s_waitcnt lgkmcnt(0)")
A(f"v_max_f32 {vr(vt+2)}, {vr(vt+2)}, {vr(vt+3)}")
A(f"v_max3_f32 {vr(vt+2)}, {vr(vt+2)}, {vr(vt+4)}, {vr(vt+5)}")
A(f"v_sub_f32 {vr(vt)}, {vr(vt)}, {vr(vt+2)}")
A(f"v_mul_f32 {vr(vt)}, s{sC0}, {vr(vt)}")
A(f"v_exp_f32 {vr(vt)}, {vr(vt)}")
nop(1)
A(f"v_cvt_pk_bf16_f32 {vr(vt+1)}, {vr(vt)}, {vr(vt)}")
A(f"ds_write_b16 {vr(vPW)}, {vr(vt+1)}")
allreduce("v_add_f32", [vt], [vt+2], [8, 4, 2, 1], swap16=False, swap32=True)
A(f"ds_write_b32 {vr(vMW)}, {vr(vt)} offset:32")
A(f"s_cmp_lg_u32 s{sLAYER}, 0")
A("s_cbranch_scc1 L_att_skipv")
A("s_waitcnt vmcnt(0)")
for t in range(4):
    for ks in range(4):
        for hh in range(2):
            A(f"ds_read_b64_tr_b16 {vr(VF+(t*4+ks)*4+2*hh,2)}, {vr(vVA+t)} offset:{ks*4096+hh*512}")
stamp(2)
A(f"s_cmp_lg_u32 s{sW}, 0")
A("s_cbranch_scc1 L_att_skipv")
A(f"v_mov_b32 {vr(vt+2)}, {L_NONCE}")
A(f"ds_read_b64 {vr(vt+4,2)}, {vr(vt+2)}")
A(f"s_lshl_b32 s{sT2}, s{sJ}, 6")
A(f"s_lshl_b32 s{sT3}, s{sG}, 3")
A(f"s_add_u32 s{sT2}, s{sT2}, s{sT3}")
A(f"s_add_u32 s{sT2}, s{sT2}, {WS_XR}")
A(f"v_mov_b32 {vr(vt+2)}, s{sT2}")
A("s_waitcnt lgkmcnt(0)")
A("s_mov_b64 exec, 1")
A(f"global_store_dwordx2 {vr(vt+2)}, {vr(vt+4,2)}, {sp(S_WS)} sc1")
A("s_mov_b64 exec, -1")
LBL("L_att_skipv")
A("s_waitcnt lgkmcnt(0)")
A("s_barrier")
for ks in range(4):
    A(f"ds_read_b128 {vr(PF+4*ks,4)}, {vr(vPA)} offset:{64*ks}")
A(f"ds_read2_b32 {vr(vt+2,2)}, {vr(vMR2)} offset0:0 offset1:2")
A(f"ds_read2_b32 {vr(vt+4,2)}, {vr(vMR2)} offset0:4 offset1:6")
A(f"ds_read2_b32 {vr(vt+6,2)}, {vr(vMR2)} offset0:8 offset1:10")
A(f"ds_read2_b32 {vr(vt+8,2)}, {vr(vMR2)} offset0:12 offset1:14")
A("s_waitcnt lgkmcnt(0)")
for ks in range(4):
    for t in range(4):
        c = "0" if ks == 0 else vr(OA+4*t, 4)
        A(f"v_mfma_f32_16x16x32_bf16 {vr(OA+4*t,4)}, {vr(VF+(t*4+ks)*4,4)}, {vr(PF+4*ks,4)}, {c}")
A(f"v_max_f32 {vr(vt+2)}, {vr(vt+2)}, {vr(vt+3)}")
A(f"v_max3_f32 {vr(vt+2)}, {vr(vt+2)}, {vr(vt+4)}, {vr(vt+5)}")
A(f"v_add_f32 {vr(vt+3)}, {vr(vt+6)}, {vr(vt+7)}")
A(f"v_add_f32 {vr(vt+4)}, {vr(vt+8)}, {vr(vt+9)}")
A(f"v_add_f32 {vr(vt+3)}, {vr(vt+3)}, {vr(vt+4)}")
A(f"v_bfi_b32 {vr(vt+2)}, 3, s{sTAG}, {vr(vt+2)}")
A(f"v_bfi_b32 {vr(vt+3)}, 3, s{sTAG}, {vr(vt+3)}")
for t in range(1, 4):
    A(f"v_add_u32 {vr(vt+3+t)}, {4096*t}, {vr(vOS)}")
nop(4)
for i in range(16):
    A(f"v_bfi_b32 {vr(OA+i)}, 3, s{sTAG}, {vr(OA+i)}")
A(f"s_mov_b64 exec, {sp(sM2)}")
st_local("global_store_dwordx4", [
    f"{vr(vOS)}, {vr(OA,4)}, {sp(S_WS)}",
    f"{vr(vt+4)}, {vr(OA+4,4)}, {sp(S_WS)}",
    f"{vr(vt+5)}, {vr(OA+8,4)}, {sp(S_WS)}",
    f"{vr(vt+6)}, {vr(OA+12,4)}, {sp(S_WS)}"])
A(f"s_mov_b64 exec, {sp(sM8)}")
st_local("global_store_dwordx2", [f"{vr(vML)}, {vr(vt+2,2)}, {sp(S_WS)}"])
A("s_mov_b64 exec, -1")
A(f"s_add_u32 s{sLAYER}, s{sLAYER}, 1")
A(f"s_lshl_b32 s{sTAG}, s{sTAG}, 1")
A(f"s_cmp_lt_u32 s{sLAYER}, 2")
A("s_cbranch_scc1 L_att_layer")
stamp(3)
stamp_flush(5, 0, vt, vt+1)
A("s_endpgm")

BF, AF, WO, W2, X = 16, 72, 128, 192, 224
XO, B2O, B1 = 232, 236, 255
T = 240
vZ = 80
LBL("L_ctrl")
for i in range(4):
    A(f"v_mov_b32 v{vZ+i}, 0")
for i in range(8):
    A(f"v_mov_b32 {vr(X+i)}, 0")
    A(f"v_mov_b32 {vr(AF+i)}, 0")
A("v_lshlrev_b32 v5, 4, v0")
A(f"s_lshl_b32 s{sT2}, s{sG}, 5")
A(f"s_add_u32 s{sT2}, s{sT2}, s{sJ}")
A(f"s_lshl_b32 s{sT3}, s{sT2}, 12")
A(f"s_add_u32 s{sT3}, s{sT3}, {WS_H2}")
A(f"v_add_u32 v6, s{sT3}, v5")
A(f"s_lshl_b32 s{sT3}, s{sT2}, 11")
A(f"s_add_u32 s{sT3}, s{sT3}, {WS_RS1}")
A(f"v_add_u32 v7, s{sT3}, v5")
A(f"v_add_u32 v8, {WS_RS2-WS_RS1}, v7")
A(f"s_lshl_b32 s{sT2}, s{sG}, 11")
A(f"s_lshl_b32 s{sT3}, s{sJ}, 6")
A(f"s_add_u32 s{sT2}, s{sT2}, s{sT3}")
A(f"v_add_u32 v9, s{sT2}, v5")
A(f"v_add_u32 v10, {WS_XG1}, v9")
A(f"v_add_u32 v11, {WS_XG2}, v9")
A(f"s_lshl_b32 s{sT2}, s{sJ}, 9")
A(f"s_lshl_b32 s{sT3}, s{sG}, 6")
A(f"s_add_u32 s{sT2}, s{sT2}, s{sT3}")
A(f"s_add_u32 s{sT2}, s{sT2}, {WS_XS1}")
A(f"v_add_u32 v12, s{sT2}, v5")
A(f"v_add_u32 v13, {WS_XS2-WS_XS1}, v12")
def local_clears(pol, z):
    for i in range(3):
        A(f"global_store_dwordx4 v6, {vr(z,4)}, {sp(S_WS)} offset:{1024*i} {pol}")
    for r in (7, 8):
        for i in range(2):
            A(f"global_store_dwordx4 v{r}, {vr(z,4)}, {sp(S_WS)} offset:{1024*i} {pol}")
    A(f"s_mov_b64 exec, {sp(sM4)}")
    for r in (9, 10, 11):
        A(f"global_store_dwordx4 v{r}, {vr(z,4)}, {sp(S_WS)} {pol}")
    A("s_mov_b64 exec, -1")


A(f"s_mov_b64 exec, {sp(sM56)}")
A(f"global_load_dwordx4 {vr(AF,4)}, v5, {sp(S_X)}")
A("s_mov_b64 exec, -1")
A("v_and_b32 v14, 3, v0")
A("v_lshlrev_b32 v14, 3, v14")
A(f"s_lshl_b32 s{sT2}, s{sJC}, 5")
A(f"v_add_u32 v14, s{sT2}, v14")
A(f"global_load_dwordx2 {vr(T,2)}, v14, {sp(S_X)}")
A(f"global_load_dwordx2 {vr(B2O,2)}, v14, {sp(S_B2)}")
A(f"s_mul_i32 s{sT2}, s{sG}, 28")
A(f"s_add_u32 s{sT2}, s{sT2}, s{sJC}")
A(f"s_lshl_b32 s{sT3}, s{sT2}, 4")
A(f"v_and_b32 {vr(T+3)}, 7, v0")
A(f"v_lshlrev_b32 {vr(T+3)}, 1, {vr(T+3)}")
A(f"v_add_u32 {vr(T+3)}, s{sT3}, {vr(T+3)}")
A(f"global_load_ushort {vr(B1)}, {vr(T+3)}, {sp(S_B1)}")
A("v_lshrrev_b32 v15, 1, v0")
A("v_lshlrev_b32 v15, 13, v15")
A(f"v_and_b32 {vr(T+2)}, 1, v0")
A(f"v_lshlrev_b32 {vr(T+2)}, 4, {vr(T+2)}")
A(f"v_add_u32 v15, v15, {vr(T+2)}")
A(f"s_lshl_b32 s{sT2}, s{sG}, 10")
A(f"s_lshl_b32 s{sT3}, s{sJ}, 5")
A(f"s_add_u32 s{sT2}, s{sT2}, s{sT3}")
A(f"v_add_u32 v15, s{sT2}, v15")
for i in range(14):
    A(f"s_mov_b32 m0, {L_WQ + 1024*i}")
    A(f"v_add_u32 {vr(T+2)}, {262144*i}, v15")
    A(f"global_load_lds_dwordx4 {vr(T+2)}, {sp(S_WQ)} {WPOL}")
local_clears("", vZ)
A(f"v_mov_b32 {vr(T+4)}, {L_REL}")
A(f"ds_write_b32 {vr(T+4)}, v{vZ}")
A("s_waitcnt lgkmcnt(0)")
A("s_barrier")
if STAMP == 4:
    stamp(5)
    A("s_waitcnt vmcnt(16)")
    stamp(6)
    A("s_waitcnt vmcnt(14)")
    stamp(7)
    A("s_waitcnt vmcnt(0)")
    stamp(8)
A(f"s_getreg_b32 s{sXCC}, hwreg(HW_REG_XCC_ID)")
A(f"s_and_b32 s{sXCC}, s{sXCC}, 15")
A(f"s_lshl_b32 s{sT2}, s{sG}, 4")
A(f"v_mov_b32 v15, s{sT2}")
A(f"s_mov_b32 s{sSPIN}, 0")
A(f"v_mov_b32 {vr(T+4)}, 0")
A(f"v_mov_b32 {vr(T+5)}, 0")
LBL("L_nonce")
A(f"global_load_dwordx2 {vr(T+2,2)}, v15, {sp(S_DBG)} sc1")
A(f"s_cmp_lt_u32 s{sSPIN}, {TMO}")
A("s_cbranch_scc1 L_nonce_nos")
A(f"global_load_dwordx2 {vr(T+4,2)}, v15, {sp(S_DBG)} offset:128 sc1")
LBL("L_nonce_nos")
A(f"s_add_u32 s{sSPIN}, s{sSPIN}, 1")
A(f"s_cmp_gt_u32 s{sSPIN}, {SPIN}")
A("s_cbranch_scc1 L_abort")
A("s_waitcnt vmcnt(0)")
A(f"v_or_b32 {vr(T+2)}, {vr(T+2)}, {vr(T+4)}")
A(f"v_or_b32 {vr(T+3)}, {vr(T+3)}, {vr(T+5)}")
A("s_nop 0")
A(f"v_readfirstlane_b32 s{sNL}, {vr(T+2)}")
A(f"v_readfirstlane_b32 s{sNH}, {vr(T+3)}")
A("s_nop 1")
A(f"s_cmp_lt_i32 s{sNH}, 0")
A("s_cbranch_scc0 L_nonce")
stamp(1)
A(f"s_or_b32 s{sT2}, s{sNL}, s{sXCC}")
A(f"v_mov_b32 {vr(T+2)}, s{sT2}")
A(f"v_mov_b32 {vr(T+3)}, s{sNH}")
A(f"s_lshl_b32 s{sT2}, s{sG}, 8")
A(f"s_lshl_b32 s{sT3}, s{sJ}, 3")
A(f"s_add_u32 s{sT2}, s{sT2}, s{sT3}")
A(f"s_add_u32 s{sT2}, s{sT2}, {WS_HF}")
A(f"v_mov_b32 v15, s{sT2}")
A("s_mov_b64 exec, 1")
A(f"global_store_dwordx2 v15, {vr(T+2,2)}, {sp(S_WS)}")
A("s_mov_b64 exec, -1")
A(f"v_mov_b32 {vr(T+4)}, {L_NONCE}")
A(f"v_mov_b32 {vr(T+2)}, s{sNL}")
A(f"ds_write_b64 {vr(T+4)}, {vr(T+2,2)}")
A("v_lshrrev_b32 v2, 4, v0")
A("v_and_b32 v1, 15, v0")
A("v_lshrrev_b32 v3, 2, v1")
A("v_and_b32 v4, 3, v0")
A("v_lshlrev_b32 v15, 3, v2")
A("v_add_u32 v15, v15, v3")
vWQA, vW1A, vXNW, vXNR = T+10, T+11, T+12, T+13
A(f"v_lshlrev_b32 {vr(vWQA)}, 5, v15")
A("v_lshlrev_b32 v3, 3, v4")
A(f"v_add_u32 {vr(vWQA)}, {vr(vWQA)}, v3")
A(f"v_add_u32 {vr(vWQA)}, {L_WQ}, {vr(vWQA)}")
A(f"v_lshlrev_b32 {vr(vW1A)}, 4, v15")
A("v_and_b32 v3, 1, v0")
A("v_lshlrev_b32 v3, 3, v3")
A(f"v_add_u32 {vr(vW1A)}, {vr(vW1A)}, v3")
A(f"v_add_u32 {vr(vW1A)}, {L_W1}, {vr(vW1A)}")
A(f"v_add_u32 {vr(vXNW)}, {L_XN}, v5")
A(f"v_lshlrev_b32 {vr(vXNR)}, 4, v2")
A(f"v_add_u32 {vr(vXNR)}, {L_XN}, {vr(vXNR)}")


def load_bfrags(addr, kstep, hstep):
    for kk in range(14):
        for hh in range(2):
            A(f"ds_read_b64_tr_b16 {vr(BF+4*kk+2*hh,2)}, {vr(addr)} offset:{kk*kstep+hh*hstep}")


load_bfrags(vWQA, 1024, 128)
for i in range(4):
    A(f"v_lshlrev_b32 {vr(X+2*i)}, 16, {vr(AF+i)}")
    A(f"v_and_b32 {vr(X+2*i+1)}, 0xffff0000, {vr(AF+i)}")
for i in range(2):
    A(f"v_lshlrev_b32 {vr(XO+2*i)}, 16, {vr(T+i)}")
    A(f"v_and_b32 {vr(XO+2*i+1)}, 0xffff0000, {vr(T+i)}")


def layernorm(xin, xout, pk, t):
    s1, s2, a, b = t, t+1, t+2, t+3
    A(f"v_add_f32 {vr(s1)}, {vr(xin)}, {vr(xin+1)}")
    A(f"v_mul_f32 {vr(s2)}, {vr(xin)}, {vr(xin)}")
    A(f"v_fmac_f32 {vr(s2)}, {vr(xin+1)}, {vr(xin+1)}")
    for i in range(2, 8):
        A(f"v_add_f32 {vr(s1)}, {vr(s1)}, {vr(xin+i)}")
        A(f"v_fmac_f32 {vr(s2)}, {vr(xin+i)}, {vr(xin+i)}")
    allreduce("v_add_f32", [s1, s2], [a, b], [8, 4, 2, 1])
    A(f"v_mul_f32 {vr(s1)}, 0x3b124925, {vr(s1)}")
    A(f"v_mul_f32 {vr(s2)}, 0x3b124925, {vr(s2)}")
    A(f"v_fma_f32 {vr(s2)}, -{vr(s1)}, {vr(s1)}, {vr(s2)}")
    A(f"v_max_f32 {vr(s2)}, 0, {vr(s2)}")
    A(f"v_cvt_pk_bf16_f32 {vr(a)}, {vr(s1)}, {vr(s2)}")
    A(f"v_lshlrev_b32 {vr(s1)}, 16, {vr(a)}")
    A(f"v_and_b32 {vr(s2)}, 0xffff0000, {vr(a)}")
    A(f"v_add_f32 {vr(s2)}, 0x3727c5ac, {vr(s2)}")
    A(f"v_cvt_pk_bf16_f32 {vr(a)}, {vr(s2)}, {vr(s2)}")
    A(f"v_lshlrev_b32 {vr(s2)}, 16, {vr(a)}")
    A(f"v_sqrt_f32 {vr(s2)}, {vr(s2)}")
    nop(1)
    A(f"v_cvt_pk_bf16_f32 {vr(a)}, {vr(s2)}, {vr(s2)}")
    A(f"v_lshlrev_b32 {vr(s2)}, 16, {vr(a)}")
    A(f"v_rcp_f32 {vr(b)}, {vr(s2)}")
    d0, d1, q0, q1 = t+4, t+5, t+6, t+7
    for i in range(4):
        A(f"v_sub_f32 {vr(d0)}, {vr(xin+2*i)}, {vr(s1)}")
        A(f"v_sub_f32 {vr(d1)}, {vr(xin+2*i+1)}, {vr(s1)}")
        A(f"v_cvt_pk_bf16_f32 {vr(a)}, {vr(d0)}, {vr(d1)}")
        A(f"v_lshlrev_b32 {vr(d0)}, 16, {vr(a)}")
        A(f"v_and_b32 {vr(d1)}, 0xffff0000, {vr(a)}")
        A(f"v_mul_f32 {vr(q0)}, {vr(d0)}, {vr(b)}")
        A(f"v_mul_f32 {vr(q1)}, {vr(d1)}, {vr(b)}")
        A(f"v_fma_f32 {vr(d0)}, -{vr(q0)}, {vr(s2)}, {vr(d0)}")
        A(f"v_fma_f32 {vr(d1)}, -{vr(q1)}, {vr(s2)}, {vr(d1)}")
        A(f"v_fmac_f32 {vr(q0)}, {vr(d0)}, {vr(b)}")
        A(f"v_fmac_f32 {vr(q1)}, {vr(d1)}, {vr(b)}")
        A(f"v_cvt_pk_bf16_f32 {vr(pk+i)}, {vr(q0)}, {vr(q1)}")
        if xout is not None:
            A(f"v_lshlrev_b32 {vr(xout+2*i)}, 16, {vr(pk+i)}")
            A(f"v_and_b32 {vr(xout+2*i+1)}, 0xffff0000, {vr(pk+i)}")


def matvec(pk, acc):
    A(f"s_mov_b64 exec, {sp(sM56)}")
    A(f"ds_write_b128 {vr(vXNW)}, {vr(pk,4)}")
    A("s_mov_b64 exec, -1")
    A("s_waitcnt lgkmcnt(0)")
    for kk in range(14):
        A(f"ds_read_b128 {vr(AF+4*kk,4)}, {vr(vXNR)} offset:{64*kk}")
    for kk in range(14):
        if kk % 2 == 0:
            A(f"s_waitcnt lgkmcnt({max(0, 12-kk)})")
        c = "0" if kk == 0 else vr(acc, 4)
        A(f"v_mfma_f32_16x16x32_bf16 {vr(acc,4)}, {vr(AF+4*kk,4)}, {vr(BF+4*kk,4)}, {c}")
    nop(9)


PK = T
ACC = T+4
LNT = AF

LBL("L_ctrl_layer")
A("s_waitcnt lgkmcnt(0)")
layernorm(X, None, PK, LNT)
A(f"s_mov_b64 exec, {sp(sM56)}")
A("s_mov_b64 exec, -1")
matvec(PK, ACC)
A(f"v_cvt_pk_bf16_f32 {vr(ACC)}, {vr(ACC)}, {vr(ACC)}")
A(f"v_lshlrev_b32 {vr(ACC)}, 16, {vr(ACC)}")
A(f"v_or_b32 {vr(ACC)}, s{sTAG}, {vr(ACC)}")
stamp(2)
if STAMP == 4:
    stamp_flush(11, 0, T+8, T+9)
    A("s_endpgm")
A(f"v_mul_u32_u24 {vr(T+8)}, 12, v0")
A(f"v_sub_u32 {vr(T+8)}, v9, {vr(T+8)}")
A(f"s_lshl_b32 s{sT2}, s{sG}, 11")
A(f"v_lshlrev_b32 {vr(T+9)}, 5, v0")
A(f"v_add_u32 {vr(T+9)}, s{sT2}, {vr(T+9)}")
A(f"s_cmp_lg_u32 s{sLAYER}, 0")
A("s_cbranch_scc1 L_ctrl_pubq")
A(f"s_mov_b64 exec, {sp(sM16)}")
A(f"global_store_dword {vr(T+8)}, {vr(ACC)}, {sp(S_WS)}")
A("s_mov_b64 exec, -1")
A(f"s_lshl_b32 s{sT2}, s{sG}, 8")
A(f"s_add_u32 s{sT2}, s{sT2}, {WS_HF}")
A("v_and_b32 v15, 31, v0")
A("v_lshlrev_b32 v15, 3, v15")
A(f"v_add_u32 v15, s{sT2}, v15")
A(f"v_add_u32 {vr(AF+14)}, {WS_HS-WS_HF}, v15")
A(f"s_mov_b32 s{sSPIN}, 0")
A(f"s_mov_b32 s{sC1}, 0")
A(f"s_mov_b32 s{sC2}, 0")
H = AF+8
A(f"v_mov_b32 {vr(H+2)}, 0")
A(f"v_mov_b32 {vr(H+3)}, 0")
LBL("L_hello")
A(f"global_load_dwordx2 {vr(H,2)}, v15, {sp(S_WS)} sc1")
A(f"s_cmp_eq_u32 s{sC1}, 0")
A("s_cbranch_scc1 L_hello_nos")
A(f"global_load_dwordx2 {vr(H+2,2)}, {vr(AF+14)}, {sp(S_WS)} sc1")
LBL("L_hello_nos")
A(f"global_load_dwordx4 {vr(AF,4)}, {vr(T+9)}, {sp(S_WS)} sc1")
A(f"global_load_dwordx4 {vr(AF+4,4)}, {vr(T+9)}, {sp(S_WS)} offset:16 sc1")
A(f"s_add_u32 s{sSPIN}, s{sSPIN}, 1")
A(f"s_cmp_gt_u32 s{sSPIN}, {SPIN}")
A("s_cbranch_scc1 L_abort")
A("s_waitcnt vmcnt(0)")
A(f"v_and_b32 {vr(H+4)}, s{sTAG}, {vr(AF)}")
for r in range(AF+1, AF+8):
    A(f"v_and_b32 {vr(H+4)}, {vr(H+4)}, {vr(r)}")
A(f"v_cmp_ne_u32 vcc, 0, {vr(H+4)}")
A("s_nop 1")
A("s_cmp_eq_u64 vcc, exec")
A(f"s_cselect_b32 s{sT2}, s{sC2}, 0")
A(f"s_cmp_lg_u32 s{sT2}, 0")
A("s_cbranch_scc1 L_fast")
A(f"v_and_b32 {vr(H+4)}, -16, {vr(H)}")
A(f"v_xor_b32 {vr(H+4)}, s{sNL}, {vr(H+4)}")
A(f"v_xor_b32 {vr(H+5)}, s{sNH}, {vr(H+1)}")
A(f"v_or_b32 {vr(H+4)}, {vr(H+4)}, {vr(H+5)}")
A(f"v_cmp_eq_u32 {sp(sT0)}, 0, {vr(H+4)}")
A(f"v_and_b32 {vr(H+4)}, -16, {vr(H+2)}")
A(f"v_xor_b32 {vr(H+4)}, s{sNL}, {vr(H+4)}")
A(f"v_xor_b32 {vr(H+5)}, s{sNH}, {vr(H+3)}")
A(f"v_or_b32 {vr(H+4)}, {vr(H+4)}, {vr(H+5)}")
A(f"v_cmp_eq_u32 vcc, 0, {vr(H+4)}")
A("s_nop 1")
A(f"v_cndmask_b32 {vr(H)}, {vr(H+2)}, {vr(H)}, {sp(sT0)}")
A(f"s_or_b64 {sp(sT0)}, {sp(sT0)}, vcc")
A(f"v_and_b32 {vr(H)}, 15, {vr(H)}")
A(f"v_cmp_ne_u32 vcc, s{sXCC}, {vr(H)}")
A("s_nop 1")
A(f"s_and_b64 vcc, vcc, {sp(sT0)}")
A("s_cmp_lg_u64 vcc, 0")
A("s_cbranch_scc1 L_slow")
A(f"s_cmp_eq_u64 {sp(sT0)}, exec")
A(f"s_cselect_b32 s{sC2}, 1, 0")
A(f"s_cmp_lt_u32 s{sSPIN}, {TMO}")
A("s_cbranch_scc1 L_hello")
A(f"s_cmp_lg_u32 s{sC1}, 0")
A("s_cbranch_scc1 L_hello")
A(f"s_mov_b32 s{sC1}, 1")


def own_record(wsbase):
    A(f"s_or_b32 s{sT2}, s{sNL}, s{sXCC}")
    A(f"v_mov_b32 {vr(H+4)}, s{sT2}")
    A(f"v_mov_b32 {vr(H+5)}, s{sNH}")
    A(f"s_lshl_b32 s{sT2}, s{sG}, 8")
    A(f"s_lshl_b32 s{sT3}, s{sJ}, 3")
    A(f"s_add_u32 s{sT2}, s{sT2}, s{sT3}")
    A(f"s_add_u32 s{sT2}, s{sT2}, {wsbase}")
    A(f"v_mov_b32 {vr(H+7)}, s{sT2}")
    A("s_mov_b64 exec, 1")
    A(f"global_store_dwordx2 {vr(H+7)}, {vr(H+4,2)}, {sp(S_WS)} sc1")
    A("s_mov_b64 exec, -1")


own_record(WS_HS)
A("s_branch L_hello")
LBL("L_slow")
own_record(WS_HS)
for i in range(4):
    A(f"v_mov_b32 {vr(AF+16+i)}, 0")
local_clears("sc1", AF+16)
A("s_waitcnt vmcnt(0)")
own_record(WS_HZ)
A(f"v_add_u32 {vr(AF+14)}, {WS_HZ-WS_HF}, v15")
A(f"s_mov_b32 s{sSPIN}, 0")
LBL("L_hello2")
A(f"global_load_dwordx2 {vr(H,2)}, {vr(AF+14)}, {sp(S_WS)} sc1")
A(f"s_add_u32 s{sSPIN}, s{sSPIN}, 1")
A(f"s_cmp_gt_u32 s{sSPIN}, {SPIN}")
A("s_cbranch_scc1 L_abort")
A("s_waitcnt vmcnt(0)")
A(f"v_and_b32 {vr(H+4)}, -16, {vr(H)}")
A(f"v_xor_b32 {vr(H+4)}, s{sNL}, {vr(H+4)}")
A(f"v_xor_b32 {vr(H+5)}, s{sNH}, {vr(H+1)}")
A(f"v_or_b32 {vr(H+4)}, {vr(H+4)}, {vr(H+5)}")
A(f"v_cmp_eq_u32 vcc, 0, {vr(H+4)}")
A("s_nop 1")
A("s_cmp_eq_u64 vcc, exec")
A("s_cbranch_scc0 L_hello2")
A(f"s_mov_b32 s{sMODE}, 0")
A(f"v_mov_b32 {vr(H)}, {L_MODE}")
A(f"v_mov_b32 {vr(H+1)}, 0")
A(f"ds_write_b32 {vr(H)}, {vr(H+1)}")
LBL("L_ctrl_pubq")
A(f"s_mov_b64 exec, {sp(sM16)}")
st_local("global_store_dword", [f"{vr(T+8)}, {vr(ACC)}, {sp(S_WS)}"])
A("s_mov_b64 exec, -1")
poll([f"global_load_dwordx4 {vr(AF,4)}, {vr(T+9)}, {sp(S_WS)}",
      f"global_load_dwordx4 {vr(AF+4,4)}, {vr(T+9)}, {sp(S_WS)} offset:16"],
     list(range(AF, AF+8)), T+8)
A("s_branch L_ctrl_gotq")
LBL("L_fast")
A(f"s_mov_b32 s{sMODE}, 1")
A(f"v_mov_b32 {vr(H)}, {L_MODE}")
A(f"v_mov_b32 {vr(H+1)}, 1")
A(f"ds_write_b32 {vr(H)}, {vr(H+1)}")
LBL("L_ctrl_gotq")
A(f"v_mov_b32 {vr(H)}, {L_REL}")
A(f"v_mov_b32 {vr(H+1)}, 1")
A(f"ds_write_b32 {vr(H)}, {vr(H+1)}")
A(f"s_mov_b32 s{sC3}, 0x07060302")
for i in range(4):
    A(f"v_perm_b32 {vr(AF+8+i)}, {vr(AF+2*i+1)}, {vr(AF+2*i)}, s{sC3}")
A(f"v_add_u32 v15, {L_Q}, v5")
A(f"ds_write_b128 v15, {vr(AF+8,4)}")
A("s_waitcnt lgkmcnt(0)")
stamp(3)
A("s_barrier")
A(f"s_cmp_eq_u32 s{sLAYER}, 0")
A("s_cbranch_scc1 L_ctrl_b1")
load_bfrags(vW1A, 512, 64)
LBL("L_ctrl_b1")
A("s_barrier")
A("s_waitcnt lgkmcnt(0)")
A("s_barrier")
stamp(4)
A(f"s_cmp_lg_u32 s{sLAYER}, 0")
A("s_cbranch_scc1 L_ctrl_noperm")
A(f"v_add_u32 v15, 65536, v5")
for r in range(16):
    base = "v5" if (r % 4) < 2 else "v15"
    A(f"ds_read_b128 {vr(WO+4*r,4)}, {base} offset:{(r%2)*32768 + (r//4)*1024}")
for r in range(8):
    base = "v5" if (r % 4) < 2 else "v15"
    A(f"ds_read_b128 {vr(W2+4*r,4)}, {base} offset:{(r%2)*32768 + (4 + r//4)*1024}")
A("s_waitcnt lgkmcnt(0)")
load_bfrags(vW1A, 512, 64)
A(f"v_and_b32 {vr(B2O+3)}, 0xffff0000, {vr(B2O+1)}")
A(f"v_lshlrev_b32 {vr(B2O+2)}, 16, {vr(B2O+1)}")
A(f"v_and_b32 {vr(B2O+1)}, 0xffff0000, {vr(B2O)}")
A(f"v_lshlrev_b32 {vr(B2O)}, 16, {vr(B2O)}")
A(f"v_lshlrev_b32 {vr(B1)}, 16, {vr(B1)}")
A(f"s_mov_b32 s{sC1}, 0x05040100")
A(f"s_mov_b32 s{sC3}, 0x07060302")
for base, npairs in ((WO, 8), (W2, 4)):
    for p in range(npairs):
        for k in range(4):
            ra = base + 8*p + k
            rb = base + 8*p + 4 + k
            A(f"v_perm_b32 {vr(T+8)}, {vr(rb)}, {vr(ra)}, s{sC1}")
            A(f"v_perm_b32 {vr(rb)}, {vr(rb)}, {vr(ra)}, s{sC3}")
            A(f"v_mov_b32 {vr(ra)}, {vr(T+8)}")
LBL("L_ctrl_noperm")
A("v_lshrrev_b32 v15, 2, v0")
A("v_lshlrev_b32 v15, 3, v15")
A("v_sub_u32 v15, v15, v5")
A("v_add_u32 v15, v15, v6")
oa, ob, mla, mlb = AF, AF+4, AF+8, AF+10
poll([f"global_load_dwordx4 {vr(oa,4)}, v6, {sp(S_WS)}",
      f"global_load_dwordx4 {vr(ob,4)}, v6, {sp(S_WS)} offset:1024",
      f"global_load_dwordx2 {vr(mla,2)}, v15, {sp(S_WS)} offset:2048",
      f"global_load_dwordx2 {vr(mlb,2)}, v15, {sp(S_WS)} offset:2176"],
     list(range(AF, AF+12)), T+8)
stamp(5)
mx, wa, wb, ls = AF+12, AF+13, AF+14, AF+15
A(f"v_max_f32 {vr(mx)}, {vr(mla)}, {vr(mlb)}")
allreduce("v_max_f32", [mx], [AF+16], [4, 8])
A(f"v_sub_f32 {vr(wa)}, {vr(mla)}, {vr(mx)}")
A(f"v_sub_f32 {vr(wb)}, {vr(mlb)}, {vr(mx)}")
A(f"v_mul_f32 {vr(wa)}, s{sC0}, {vr(wa)}")
A(f"v_mul_f32 {vr(wb)}, s{sC0}, {vr(wb)}")
A(f"v_exp_f32 {vr(wa)}, {vr(wa)}")
A(f"v_exp_f32 {vr(wb)}, {vr(wb)}")
nop(1)
A(f"v_mul_f32 {vr(ls)}, {vr(wa)}, {vr(mla+1)}")
A(f"v_fmac_f32 {vr(ls)}, {vr(wb)}, {vr(mlb+1)}")
for i in range(4):
    A(f"v_mul_f32 {vr(oa+i)}, {vr(wa)}, {vr(oa+i)}")
    A(f"v_fmac_f32 {vr(oa+i)}, {vr(wb)}, {vr(ob+i)}")
allreduce("v_add_f32", [ls, oa, oa+1, oa+2, oa+3], list(range(AF+16, AF+21)), [4, 8])
A(f"v_rcp_f32 {vr(ls)}, {vr(ls)}")
nop(1)
for i in range(4):
    A(f"v_mul_f32 {vr(oa+i)}, {vr(oa+i)}, {vr(ls)}")
A(f"v_cvt_pk_bf16_f32 {vr(ob)}, {vr(oa)}, {vr(oa+1)}")
A(f"v_cvt_pk_bf16_f32 {vr(ob+1)}, {vr(oa+2)}, {vr(oa+3)}")
dump([ob, ob+1], 0, 15)
nop(1)
for qq in range(4):
    for p in range(2):
        A(f"v_readlane_b32 s{sPK+2*qq+p}, {vr(ob+p)}, {qq}")
nop(2)
PA = AF+24


def dotpartial(base, npairs):
    for p in range(npairs):
        for c in range(8):
            w = base + 8*p + (c >> 1) + 4*(c & 1)
            if p == 0:
                A(f"v_dot2_f32_bf16 {vr(PA+c)}, s{sPK+p}, {vr(w)}, 0")
            else:
                A(f"v_dot2_f32_bf16 {vr(PA+c)}, s{sPK+p}, {vr(w)}, {vr(PA+c)}")
    nop(3)
    for c in range(8):
        A(f"v_bfi_b32 {vr(PA+c)}, 3, s{sTAG}, {vr(PA+c)}")


def publish_rs(wsbase):
    A(f"s_lshl_b32 s{sT2}, s{sG}, 16")
    A(f"s_lshl_b32 s{sT3}, s{sJ}, 6")
    A(f"s_add_u32 s{sT2}, s{sT2}, s{sT3}")
    A(f"s_add_u32 s{sT2}, s{sT2}, {wsbase}")
    A("v_lshrrev_b32 v15, 1, v0")
    A("v_lshlrev_b32 v15, 11, v15")
    A(f"v_and_b32 {vr(T+8)}, 1, v0")
    A(f"v_lshlrev_b32 {vr(T+8)}, 5, {vr(T+8)}")
    A(f"v_add3_u32 v15, v15, {vr(T+8)}, s{sT2}")
    A(f"s_mov_b64 exec, {sp(sM56)}")
    st_local("global_store_dwordx4", [f"v15, {vr(PA,4)}, {sp(S_WS)}",
                                      f"v15, {vr(PA+4,4)}, {sp(S_WS)} offset:16"])
    A("s_mov_b64 exec, -1")


dotpartial(WO, 8)
publish_rs(WS_RS1)
stamp(6)
A(f"s_cmp_ge_u32 s{sJ}, 28")
A("s_cbranch_scc1 L_ctrl_skipmlp")


def reduce_stage(vinbox, vxs, nprod, wsxs):
    a, b = AF, AF+4
    if nprod == 32:
        poll([f"global_load_dwordx4 {vr(a,4)}, v{vinbox}, {sp(S_WS)}",
              f"global_load_dwordx4 {vr(b,4)}, v{vinbox}, {sp(S_WS)} offset:1024"],
             list(range(AF, AF+8)), T+8)
    else:
        for i in range(4):
            A(f"v_mov_b32 {vr(b+i)}, s{sTAG}")
        l = newlab("poll")
        A(f"s_mov_b32 s{sSPIN}, 0")
        LBL(l)
        A(f"global_load_dwordx4 {vr(a,4)}, v{vinbox}, {sp(S_WS)} sc1")
        A("s_mov_b32 exec_hi, 0xffff")
        A(f"global_load_dwordx4 {vr(b,4)}, v{vinbox}, {sp(S_WS)} offset:1024 sc1")
        A("s_mov_b64 exec, -1")
        A(f"s_add_u32 s{sSPIN}, s{sSPIN}, 1")
        A(f"s_cmp_gt_u32 s{sSPIN}, {SPIN}")
        A("s_cbranch_scc1 L_abort")
        A("s_waitcnt vmcnt(0)")
        A(f"v_and_b32 {vr(T+8)}, s{sTAG}, {vr(a)}")
        for r in range(AF+1, AF+8):
            A(f"v_and_b32 {vr(T+8)}, {vr(T+8)}, {vr(r)}")
        A(f"v_cmp_ne_u32 vcc, 0, {vr(T+8)}")
        A("s_nop 1")
        A("s_cmp_eq_u64 vcc, exec")
        A(f"s_cbranch_scc0 {l}")
    for i in range(4):
        A(f"v_add_f32 {vr(a+i)}, {vr(a+i)}, {vr(b+i)}")
    allreduce("v_add_f32", [a, a+1, a+2, a+3], list(range(AF+8, AF+12)), [4, 8])
    for i in range(4):
        A(f"v_bfi_b32 {vr(a+i)}, 3, s{sTAG}, {vr(a+i)}")
    A(f"s_mov_b64 exec, {sp(sM4)}")
    A(f"global_store_dwordx4 v{vxs}, {vr(a,4)}, {sp(S_WS)} sc1")
    A("s_mov_b64 exec, -1")
    A(f"s_lshl_b32 s{sT2}, s{sJ}, 9")
    A(f"s_add_u32 s{sT2}, s{sT2}, {wsxs}")
    A(f"v_add_u32 v15, s{sT2}, v5")
    for i in range(4):
        A(f"v_mov_b32 {vr(b+i)}, 0")
    A(f"s_mov_b64 exec, {sp(sM32)}")
    poll([f"global_load_dwordx4 {vr(b,4)}, v15, {sp(S_WS)}"], list(range(b, b+4)), T+8)
    A("s_mov_b64 exec, -1")
    allreduce("v_add_f32", [b, b+1, b+2, b+3], list(range(AF+8, AF+12)), [4, 8], swap16=True, swap32=False)
    return b


def bf16round(regs, tmp):
    for i in range(0, len(regs), 2):
        A(f"v_cvt_pk_bf16_f32 {vr(tmp)}, {vr(regs[i])}, {vr(regs[i+1])}")
        A(f"v_lshlrev_b32 {vr(regs[i])}, 16, {vr(tmp)}")
        A(f"v_and_b32 {vr(regs[i+1])}, 0xffff0000, {vr(tmp)}")


def gather_x(wsxg):
    A(f"s_lshl_b32 s{sT2}, s{sG}, 11")
    A(f"s_add_u32 s{sT2}, s{sT2}, {wsxg}")
    A("v_lshlrev_b32 v15, 5, v0")
    A(f"v_add_u32 v15, s{sT2}, v15")
    A(f"s_mov_b64 exec, {sp(sM56)}")
    poll([f"global_load_dwordx4 {vr(X,4)}, v15, {sp(S_WS)}",
          f"global_load_dwordx4 {vr(X+4,4)}, v15, {sp(S_WS)} offset:16"],
         list(range(X, X+8)), T+8)
    for i in range(8):
        A(f"v_and_b32 {vr(X+i)}, 0xffff0000, {vr(X+i)}")
    A("s_mov_b64 exec, -1")


A(f"s_cmp_lg_u32 s{sLAYER}, 0")
A("s_cbranch_scc1 L_xr_ok")
A("v_lshlrev_b32 v15, 4, v0")
A(f"s_lshl_b32 s{sT2}, s{sJ}, 6")
A(f"s_add_u32 s{sT2}, s{sT2}, {WS_XR}")
A(f"v_lshlrev_b32 {vr(AF+6)}, 3, v0")
A(f"v_add_u32 {vr(AF+6)}, s{sT2}, {vr(AF+6)}")
A(f"s_mov_b64 exec, {sp(sM8)}")
A(f"s_mov_b32 s{sSPIN}, 0")
LBL("L_xr")
A(f"global_load_dwordx2 {vr(AF,2)}, v15, {sp(S_DBG)} offset:128 sc1")
A(f"global_load_dwordx2 {vr(AF+2,2)}, {vr(AF+6)}, {sp(S_WS)} sc1")
A(f"s_add_u32 s{sSPIN}, s{sSPIN}, 1")
A(f"s_cmp_gt_u32 s{sSPIN}, {SPIN}")
A("s_cbranch_scc1 L_abort")
A("s_waitcnt vmcnt(0)")
A(f"v_xor_b32 {vr(AF+4)}, {vr(AF)}, {vr(AF+2)}")
A(f"v_xor_b32 {vr(AF+5)}, {vr(AF+1)}, {vr(AF+3)}")
A(f"v_or_b32 {vr(AF+4)}, {vr(AF+4)}, {vr(AF+5)}")
A(f"v_cmp_eq_u32 {sp(sT0)}, 0, {vr(AF+4)}")
A(f"v_cmp_gt_i32 vcc, 0, {vr(AF+1)}")
A("s_nop 1")
A(f"s_and_b64 vcc, vcc, {sp(sT0)}")
A("s_cmp_eq_u64 vcc, exec")
A("s_cbranch_scc0 L_xr")
A("s_mov_b64 exec, -1")
LBL("L_xr_ok")
r = reduce_stage(7, 12, 32, WS_XS1)
bf16round([r, r+1, r+2, r+3], T+8)
for i in range(4):
    A(f"v_add_f32 {vr(XO+i)}, {vr(XO+i)}, {vr(r+i)}")
bf16round([XO, XO+1, XO+2, XO+3], T+8)
for i in range(4):
    A(f"v_or_b32 {vr(r+i)}, s{sTAG}, {vr(XO+i)}")
A(f"s_mov_b64 exec, {sp(sM4)}")
st_local("global_store_dwordx4", [f"v10, {vr(r,4)}, {sp(S_WS)}"])
A("s_mov_b64 exec, -1")
stamp(7)
gather_x(WS_XG1)
dump(list(range(X, X+8)), 2, 15)
Y = AF+16
layernorm(X, Y, PK, LNT)
A(f"s_mov_b64 exec, {sp(sM56)}")
A("s_not_b64 exec, exec")
for i in range(8):
    A(f"v_mov_b32 {vr(Y+i)}, 0")
A("s_mov_b64 exec, -1")
layernorm(Y, None, PK, LNT)
matvec(PK, ACC)
h = ACC
A(f"v_cvt_pk_bf16_f32 {vr(h)}, {vr(h)}, {vr(h)}")
A(f"v_lshlrev_b32 {vr(h)}, 16, {vr(h)}")
A(f"v_add_f32 {vr(h)}, {vr(h)}, {vr(B1)}")
A(f"v_cvt_pk_bf16_f32 {vr(h)}, {vr(h)}, {vr(h)}")
A(f"v_lshlrev_b32 {vr(h)}, 16, {vr(h)}")
A(f"v_mul_f32 {vr(h+1)}, {vr(h)}, {vr(h)}")
A(f"v_mul_f32 {vr(h+1)}, {vr(h+1)}, {vr(h)}")
A(f"v_mov_b32 {vr(h+2)}, {vr(h)}")
A(f"v_fmac_f32 {vr(h+2)}, 0x3d372713, {vr(h+1)}")
A(f"v_mul_f32 {vr(h+2)}, 0x40135761, {vr(h+2)}")
A(f"v_exp_f32 {vr(h+2)}, {vr(h+2)}")
nop(1)
A(f"v_add_f32 {vr(h+2)}, 1.0, {vr(h+2)}")
A(f"v_rcp_f32 {vr(h+2)}, {vr(h+2)}")
nop(1)
A(f"v_sub_f32 {vr(h+2)}, 1.0, {vr(h+2)}")
A(f"v_mul_f32 {vr(h)}, {vr(h)}, {vr(h+2)}")
A(f"v_cvt_pk_bf16_f32 {vr(h)}, {vr(h)}, {vr(h)}")
dump([h], 12, 15)
nop(1)
for p in range(4):
    A(f"v_readlane_b32 s{sRL}, {vr(h)}, {2*p}")
    A(f"v_readlane_b32 s{sRL+1}, {vr(h)}, {2*p+1}")
    nop(1)
    A(f"s_pack_ll_b32_b16 s{sPK+p}, s{sRL}, s{sRL+1}")
nop(2)
dotpartial(W2, 4)
publish_rs(WS_RS2)
stamp(8)
r = reduce_stage(8, 13, 28, WS_XS2)
bf16round([r, r+1, r+2, r+3], T+8)
for i in range(4):
    A(f"v_add_f32 {vr(r+i)}, {vr(r+i)}, {vr(B2O+i)}")
bf16round([r, r+1, r+2, r+3], T+8)
for i in range(4):
    A(f"v_add_f32 {vr(XO+i)}, {vr(XO+i)}, {vr(r+i)}")
bf16round([XO, XO+1, XO+2, XO+3], T+8)
A(f"s_cmp_lg_u32 s{sLAYER}, 0")
A("s_cbranch_scc1 L_ctrl_final")
for i in range(4):
    A(f"v_or_b32 {vr(r+i)}, s{sTAG}, {vr(XO+i)}")
A(f"s_mov_b64 exec, {sp(sM4)}")
st_local("global_store_dwordx4", [f"v11, {vr(r,4)}, {sp(S_WS)}"])
A("s_mov_b64 exec, -1")
LBL("L_ctrl_skipmlp")
A(f"s_cmp_lg_u32 s{sLAYER}, 0")
A("s_cbranch_scc1 L_ctrl_done")
stamp(9)
load_bfrags(vWQA, 1024, 128)
gather_x(WS_XG2)
dump(list(range(X, X+8)), 14, 15)
stamp(10)
stamp_flush(11, 0, T+8, T+9)
A(f"s_mov_b32 s{sLAYER}, 1")
A(f"s_mov_b32 s{sTAG}, 2")
A("s_branch L_ctrl_layer")

LBL("L_ctrl_final")
A(f"s_cmp_lg_u32 s{sG}, 0")
A("s_cbranch_scc1 L_ctrl_done")
A(f"v_cvt_pk_bf16_f32 {vr(T)}, {vr(XO)}, {vr(XO+1)}")
A(f"v_cvt_pk_bf16_f32 {vr(T+1)}, {vr(XO+2)}, {vr(XO+3)}")
A(f"s_mov_b64 exec, {sp(sM4)}")
A(f"global_store_dwordx2 v14, {vr(T,2)}, {sp(S_OUT)}")
A("s_mov_b64 exec, -1")
LBL("L_ctrl_done")
stamp(9)
stamp_flush(11, 16, T+8, T+9)
LBL("L_abort")
LBL("L_end")
A("s_endpgm")

lines.append('.section .rodata,"a"')
lines.append(".p2align 6")
lines.append(f".amdhsa_kernel {NAME}_kernel")
lines.append("  .amdhsa_next_free_vgpr 256")
lines.append("  .amdhsa_next_free_sgpr 102")
lines.append("  .amdhsa_accum_offset 256")
lines.append("  .amdhsa_group_segment_fixed_size 0")
lines.append("  .amdhsa_kernarg_size 104")
lines.append("  .amdhsa_user_sgpr_count 2")
lines.append("  .amdhsa_user_sgpr_kernarg_segment_ptr 1")
lines.append("  .amdhsa_system_sgpr_workgroup_id_x 1")
lines.append(".end_amdhsa_kernel")
open(OUT, "w").write("\n".join(lines) + "\n")
print("wrote", OUT, len(lines), "lines")
```

```python
import sys

NAME = "interleave_layers__sliding_block_cached__mixer_channel_mlp__decode"
DEBUG = int(sys.argv[1]) if len(sys.argv) > 1 else 0
STAMP = int(sys.argv[2]) if len(sys.argv) > 2 else 0
import os
KVPOL = os.environ.get("KVPOL", "nt")
W2POL = os.environ.get("W2POL", "nt")
WPOL = os.environ.get("WPOL", "")
WIN = int(os.environ.get("WIN", "8"))
OUT = sys.argv[3] if len(sys.argv) > 3 else f"cdna_kernels/{NAME}.s"

WS_Q = 0x000000
WS_XG1 = 0x010000
WS_XG2 = 0x020000
WS_XS1 = 0x030000
WS_XS2 = 0x040000
WS_HF = 0x050000
WS_HS = 0x051000
WS_HZ = 0x052000
WS_XR = 0x053000
WS_H2 = 0x100000
WS_RS1 = 0x200000
WS_RS2 = 0x300000
WS_DBG = 0x400000
WS_STAMP = 0x800000

L_WQ = 131072
L_W1 = L_WQ + 14336
L_XN = L_W1 + 7168
L_Q = L_XN + 1024
L_P = L_Q + 1024
L_M = L_P + 512
L_L = L_M + 32
L_MODE = L_L + 32
L_NONCE = L_MODE + 8
L_REL = L_NONCE + 8
LDS_BYTES = 155648

SPIN = 400000
LOG2E = 0x3fb8aa3b

lines = []
lab_id = [0]


def A(s):
    lines.append("    " + s)


def LBL(s):
    lines.append(s + ":")


def newlab(p):
    lab_id[0] += 1
    return f"L_{p}_{lab_id[0]}"


def vr(a, n=1):
    return f"v{a}" if n == 1 else f"v[{a}:{a+n-1}]"


def nop(n):
    while n > 0:
        k = min(n, 16)
        A(f"s_nop {k-1}")
        n -= k


S_X, S_K, S_V, S_WQ, S_WO, S_W1, S_B1, S_W2, S_B2, S_OUT, S_DBG, S_WS = 4, 6, 8, 10, 12, 16, 18, 20, 22, 24, 26, 28
sG, sJ, sW, sTAG, sMODE, sSPIN = 30, 31, 32, 33, 34, 35
sEX = 36
sT0 = 38
sT2 = 40
sT3 = 41
sVB = 42
sLB = 44
sJC = 45
sPK = 48
sM56 = 56
sM4 = 58
sM32 = 60
sMH1 = 62
sMT1 = 64
sM2 = 66
sM8 = 68
sM16 = 70
sC0 = 72
sC1 = 73
sC2 = 74
sC3 = 3
sLAYER = 76
sXCC = 79
sREL = 75
sNL = 46
sNH = 47
TMO = 300
sST = 80
sRL = 77


def sp(a):
    return f"s[{a}:{a+1}]"


def st_local(op, rest):
    lf = newlab("f")
    le = newlab("e")
    A(f"s_cmp_eq_u32 s{sMODE}, 1")
    A(f"s_cbranch_scc1 {lf}")
    for r in rest:
        A(f"{op} {r} sc1")
    A(f"s_branch {le}")
    LBL(lf)
    for r in rest:
        A(f"{op} {r}")
    LBL(le)


def poll(loads, regs, tmp, abort="L_abort"):
    l = newlab("poll")
    ld = newlab("pd")
    A(f"s_mov_b32 s{sSPIN}, 0")
    LBL(l)
    for x in loads:
        A(f"{x} sc1")
    A(f"s_add_u32 s{sSPIN}, s{sSPIN}, 1")
    A(f"s_cmp_gt_u32 s{sSPIN}, {SPIN}")
    A(f"s_cbranch_scc1 {abort}")
    A("s_waitcnt vmcnt(0)")
    A(f"v_and_b32 {vr(tmp)}, s{sTAG}, {vr(regs[0])}")
    for r in regs[1:]:
        A(f"v_and_b32 {vr(tmp)}, {vr(tmp)}, {vr(r)}")
    A(f"v_cmp_ne_u32 vcc, 0, {vr(tmp)}")
    A("s_nop 1")
    A("s_cmp_eq_u64 vcc, exec")
    A(f"s_cbranch_scc0 {l}")
    LBL(ld)


def dpp(op, d, s, ror):
    A(f"{op}_dpp {vr(d)}, {vr(s)}, {vr(d)} row_ror:{ror} row_mask:0xf bank_mask:0xf")


def allreduce(op, regs, tmps, rors, swap16=True, swap32=True):
    n = len(regs)
    nop(2)
    for ro in rors:
        for r in regs:
            dpp(op, r, r, ro)
        if n < 3:
            nop(3 - n)
    for which, en in (("16", swap16), ("32", swap32)):
        if not en:
            continue
        for r, t in zip(regs, tmps):
            A(f"v_mov_b32 {vr(t)}, {vr(r)}")
        nop(2)
        for r, t in zip(regs, tmps):
            A(f"v_permlane{which}_swap_b32 {vr(r)}, {vr(t)}")
        nop(1)
        for r, t in zip(regs, tmps):
            A(f"{op} {vr(r)}, {vr(r)}, {vr(t)}")


dbg_slot = [0]


def dump(regs, slot, atmp):
    if not DEBUG:
        return
    A(f"s_lshl_b32 s{sT2}, s2, 14")
    A(f"s_add_u32 s{sT2}, s{sT2}, {WS_DBG + slot*256}")
    A(f"v_lshlrev_b32 {vr(atmp)}, 2, v0")
    A(f"v_add_u32 {vr(atmp)}, s{sT2}, {vr(atmp)}")
    for i, r in enumerate(regs):
        A(f"global_store_dword {vr(atmp)}, {vr(r)}, {sp(S_WS)} offset:{i*256}")


stamp_n = [0]


def stamp(idx, final=False):
    if not STAMP:
        return
    if STAMP == 5 and not final and idx > 0:
        l = newlab("st")
        A(f"s_cmp_lg_u32 s{sLAYER}, 0")
        A(f"s_cbranch_scc1 {l}")
        A(f"s_memrealtime s[{sST+2*idx}:{sST+2*idx+1}]")
        LBL(l)
        return
    A(f"s_memrealtime s[{sST+2*idx}:{sST+2*idx+1}]")


def stamp_flush(n, base_slot, vt, vt2):
    if not STAMP or STAMP == 5:
        return
    A("s_waitcnt lgkmcnt(0)")
    A(f"s_lshl_b32 s{sT2}, s2, 3")
    A(f"s_add_u32 s{sT2}, s{sT2}, s{sW}")
    A(f"s_lshl_b32 s{sT2}, s{sT2}, 8")
    A(f"s_add_u32 s{sT2}, s{sT2}, {WS_STAMP + base_slot*4}")
    A(f"v_mov_b32 {vr(vt)}, s{sT2}")
    for i in range(n):
        A(f"v_mov_b32 {vr(vt2)}, s{sST+2*i}")
        A(f"global_store_dword {vr(vt)}, {vr(vt2)}, {sp(S_WS)} offset:{4*i}")
        nop(1)


hdr = open(f"cdna_kernels/{NAME}.s.ref").read().split("\n")
head = []
for h in hdr:
    if h.startswith("; @launch"):
        head.append(f"; @launch grid=(256,1,1) block=(320,1,1) lds={LDS_BYTES}")
        break
    head.append(h)
lines.extend(head)
lines.append('.amdgcn_target "amdgcn-amd-amdhsa--gfx950"')
lines.append(".text")
lines.append(f".globl {NAME}_kernel")
lines.append(".p2align 8")
lines.append(f".type {NAME}_kernel,@function")
LBL(f"{NAME}_kernel")

A("s_cmp_ge_u32 s2, 256")
A("s_cbranch_scc1 L_end")
stamp(0)
A("s_load_dwordx16 s[4:19], s[0:1], 0")
A("s_load_dwordx8 s[20:27], s[0:1], 64")
A("s_load_dwordx2 s[28:29], s[0:1], 96")
A(f"s_and_b32 s{sG}, s2, 7")
A(f"s_lshr_b32 s{sJ}, s2, 3")
A(f"s_min_u32 s{sJC}, s{sJ}, 27")
A("v_lshrrev_b32 v1, 6, v0")
A("v_and_b32 v0, 63, v0")
A("s_nop 1")
A(f"v_readfirstlane_b32 s{sW}, v1")
A(f"s_mov_b32 s{sTAG}, 1")
A(f"s_mov_b32 s{sMODE}, 0")
A(f"s_mov_b32 s{sLAYER}, 0")
A(f"s_mov_b32 s{sM56}, -1")
A(f"s_mov_b32 s{sM56+1}, 0x00ffffff")
A(f"s_mov_b32 s{sM4}, 15")
A(f"s_mov_b32 s{sM4+1}, 0")
A(f"s_mov_b32 s{sM32}, -1")
A(f"s_mov_b32 s{sM32+1}, 0")
A(f"s_mov_b32 s{sMH1}, 0xffff0000")
A(f"s_mov_b32 s{sMH1+1}, 0xffff0000")
A(f"s_mov_b32 s{sMT1}, 0")
A(f"s_mov_b32 s{sMT1+1}, -1")
A(f"s_mov_b32 s{sM2}, 0x00030003")
A(f"s_mov_b32 s{sM2+1}, 0x00030003")
A(f"s_mov_b32 s{sM8}, 0xff")
A(f"s_mov_b32 s{sM8+1}, 0")
A(f"s_mov_b32 s{sM16}, 0xffff")
A(f"s_mov_b32 s{sM16+1}, 0")
A(f"s_mov_b32 s{sC0}, {LOG2E:#x}")
A("s_waitcnt lgkmcnt(0)")
A(f"s_cmp_eq_u32 s{sW}, 4")
A("s_cbranch_scc1 L_ctrl")

KF, VF, QF, SA, PF, OA = 16, 80, 144, 176, 184, 200
vKA = 216
vVA = 224
vQA, vPA, vPW, vMW, vMR, vMR2, vOS, vML = 228, 229, 230, 231, 232, 233, 234, 235
vt = 236

A(f"s_lshl_b32 s{sT2}, s{sG}, 25")
A(f"s_add_u32 s{sT2}, s{sT2}, 31457280")
A(f"s_lshl_b32 s{sT3}, s{sJ}, 16")
A(f"s_add_u32 s{sT2}, s{sT2}, s{sT3}")
A(f"s_lshl_b32 s{sT3}, s{sW}, 14")
A(f"s_add_u32 s{sT3}, s{sT2}, s{sT3}")
A(f"s_add_u32 s{sT0}, s{S_K}, s{sT3}")
A(f"s_addc_u32 s{sT0+1}, s{S_K+1}, 0")
A(f"s_lshl_b32 s{sT3}, s{sW}, 7")
A(f"s_add_u32 s{sT3}, s{sT2}, s{sT3}")
A(f"s_add_u32 s{sVB}, s{S_V}, s{sT3}")
A(f"s_addc_u32 s{sVB+1}, s{S_V+1}, 0")
A(f"s_lshl_b32 s{sLB}, s{sW}, 15")
A(f"s_lshl_b32 s{sT2}, s{sG}, 4")
A(f"v_mov_b32 v10, s{sT2}")
A("v_mov_b32 v8, 0")
A("v_mov_b32 v9, 0")
A(f"s_or_b32 s{sT2}, s{sJ}, s{sW}")
A(f"s_cmp_lg_u32 s{sT2}, 0")
A("s_cbranch_scc1 L_att_nolead")
A(f"s_memrealtime s[{sPK}:{sPK+1}]")
A("s_waitcnt lgkmcnt(0)")
A(f"s_and_b32 s{sPK+2}, s{sPK}, 0xfffffff0")
A(f"s_or_b32 s{sPK+3}, s{sPK+1}, 0x80000000")
A(f"v_mov_b32 v8, s{sPK+2}")
A(f"v_mov_b32 v9, s{sPK+3}")
A(f"s_lshl_b32 s{sT2}, s{sG}, 4")
A(f"v_mov_b32 v10, s{sT2}")
A("s_mov_b64 exec, 1")
A(f"global_store_dwordx2 v10, v[8:9], {sp(S_DBG)}")
A("s_mov_b64 exec, -1")
LBL("L_att_nolead")
A("s_barrier")
A(f"v_mov_b32 v11, {L_REL}")
A(f"s_mov_b32 s{sREL}, 0")


def throttle():
    l = newlab("go")
    A(f"s_cmp_lg_u32 s{sREL}, 0")
    A(f"s_cbranch_scc1 {l}")
    A("ds_read_b32 v12, v11")
    A("s_waitcnt lgkmcnt(0)")
    A(f"v_readfirstlane_b32 s{sREL}, v12")
    A(f"s_waitcnt vmcnt({WIN-1})")
    LBL(l)


A("v_lshrrev_b32 v1, 5, v0")
A("v_and_b32 v2, 31, v0")
A("v_xor_b32 v2, v2, v1")
A("v_lshlrev_b32 v2, 4, v2")
A("v_lshlrev_b32 v1, 9, v1")
A("v_or_b32 v2, v2, v1")
for i in range(16):
    blk = i >> 2
    if (i & 3) == 0:
        A(f"s_add_u32 m0, s{sLB}, {4096*blk}")
    c = ((2 * i) & 14) * 16
    A(f"v_xor_b32 v3, {c}, v2")
    A(f"v_add_u32 v3, {4096*blk}, v3")
    if i >= WIN:
        throttle()
    A(f"global_load_lds_dwordx4 v3, {sp(sT0)} offset:{1024*(i&3)} {KVPOL}")
A("v_lshrrev_b32 v1, 3, v0")
A("v_and_b32 v4, 7, v0")
A("v_lshrrev_b32 v5, 1, v4")
A("v_lshrrev_b32 v6, 1, v1")
A("v_and_b32 v6, 1, v6")
A("v_xor_b32 v5, v5, v6")
A("v_lshlrev_b32 v5, 5, v5")
A("v_and_b32 v4, 1, v4")
A("v_lshlrev_b32 v4, 4, v4")
A("v_or_b32 v5, v5, v4")
A("v_lshlrev_b32 v1, 9, v1")
A("v_or_b32 v5, v5, v1")
A("v_xor_b32 v6, 64, v5")
for i in range(16):
    A(f"s_add_u32 m0, s{sLB}, {16384 + 1024*i}")
    A(f"v_add_u32 v3, {4096*i}, v{5 + (i & 1)}")
    if 16 + i >= WIN:
        throttle()
    A(f"global_load_lds_dwordx4 v3, {sp(sVB)} {KVPOL}")
A(f"s_cmp_lg_u32 s{sW}, 0")
A("s_cbranch_scc1 L_att_nox")
A(f"s_cmp_lg_u32 s{sJ}, 0")
A("s_cbranch_scc1 L_att_nolead2")
A("s_mov_b64 exec, 1")
A(f"global_store_dwordx2 v10, v[8:9], {sp(S_DBG)} offset:128 sc1")
A("s_mov_b64 exec, -1")
LBL("L_att_nolead2")
for i in range(4):
    A(f"v_mov_b32 v{12+i}, 0")
A(f"s_lshl_b32 s{sT2}, s{sJ}, 9")
A(f"s_lshl_b32 s{sT3}, s{sG}, 6")
A(f"s_add_u32 s{sT2}, s{sT2}, s{sT3}")
A(f"s_add_u32 s{sT2}, s{sT2}, {WS_XS1}")
A("v_lshlrev_b32 v11, 4, v0")
A(f"v_add_u32 v11, s{sT2}, v11")
A(f"v_add_u32 v7, {WS_XS2-WS_XS1}, v11")
A(f"s_mov_b64 exec, {sp(sM4)}")
A(f"global_store_dwordx4 v11, v[12:15], {sp(S_WS)} sc1")
A(f"global_store_dwordx4 v7, v[12:15], {sp(S_WS)} sc1")
A("s_mov_b64 exec, -1")
LBL("L_att_nox")
A("v_and_b32 v1, 15, v0")
A("v_lshrrev_b32 v2, 4, v0")
A("v_xor_b32 v3, v2, v1")
A("v_lshlrev_b32 v3, 4, v3")
A("v_lshlrev_b32 v4, 9, v1")
A("v_or_b32 v3, v3, v4")
A(f"v_add_u32 v3, s{sLB}, v3")
for kk in range(8):
    A(f"v_xor_b32 {vr(vKA+kk)}, {64*kk}, v3")
A("v_lshrrev_b32 v3, 2, v1")
A("v_and_b32 v4, 3, v0")
A("v_lshrrev_b32 v5, 1, v3")
A("v_and_b32 v5, 1, v5")
A("v_and_b32 v6, 1, v2")
A("v_lshlrev_b32 v6, 1, v6")
A("v_or_b32 v5, v5, v6")
A("v_lshlrev_b32 v6, 3, v2")
A("v_add_u32 v6, v6, v3")
A("v_lshlrev_b32 v6, 7, v6")
A("v_lshlrev_b32 v4, 3, v4")
A("v_add_u32 v6, v6, v4")
A(f"v_add_u32 v6, s{sLB}, v6")
A("v_add_u32 v6, 16384, v6")
for t in range(4):
    A(f"v_xor_b32 v7, {t}, v5")
    A("v_lshlrev_b32 v7, 5, v7")
    A(f"v_add_u32 {vr(vVA+t)}, v6, v7")
A("v_and_b32 v3, 1, v0")
A("v_lshlrev_b32 v4, 4, v2")
A("v_lshlrev_b32 v5, 9, v3")
A("v_add_u32 v5, v5, v4")
A(f"v_add_u32 {vr(vQA)}, {L_Q}, v5")
A("v_lshlrev_b32 v5, 8, v3")
A("v_add_u32 v5, v5, v4")
A(f"v_add_u32 {vr(vPA)}, {L_P}, v5")
A("v_lshlrev_b32 v5, 2, v3")
A(f"v_add_u32 {vr(vMR2)}, {L_M}, v5")
A("v_and_b32 v4, 1, v2")
A("v_lshlrev_b32 v5, 8, v4")
A("v_lshrrev_b32 v6, 1, v2")
A("v_lshlrev_b32 v6, 4, v6")
A("v_add_u32 v6, v6, v1")
A(f"s_lshl_b32 s{sT2}, s{sW}, 5")
A(f"v_add_u32 v6, s{sT2}, v6")
A("v_lshlrev_b32 v6, 1, v6")
A("v_add_u32 v5, v5, v6")
A(f"v_add_u32 {vr(vPW)}, {L_P}, v5")
A("v_lshlrev_b32 v5, 2, v4")
A(f"v_add_u32 {vr(vMR)}, {L_M}, v5")
A(f"s_lshl_b32 s{sT2}, s{sW}, 3")
A(f"v_add_u32 {vr(vMW)}, s{sT2}, {vr(vMR)}")
A(f"s_lshl_b32 s{sT2}, s{sG}, 5")
A(f"s_lshl_b32 s{sT3}, s{sW}, 2")
A(f"s_add_u32 s{sT2}, s{sT2}, s{sT3}")
A(f"s_lshl_b32 s{sT2}, s{sT2}, 12")
A(f"s_lshl_b32 s{sT3}, s{sJ}, 6")
A(f"s_add_u32 s{sT2}, s{sT2}, s{sT3}")
A(f"s_add_u32 s{sT2}, s{sT2}, {WS_H2}")
A("v_lshlrev_b32 v5, 16, v3")
A("v_lshlrev_b32 v6, 4, v2")
A("v_add_u32 v5, v5, v6")
A(f"v_add_u32 {vr(vOS)}, s{sT2}, v5")
A(f"s_lshl_b32 s{sT2}, s{sG}, 5")
A(f"s_lshl_b32 s{sT3}, s{sW}, 2")
A(f"s_add_u32 s{sT2}, s{sT2}, s{sT3}")
A(f"s_lshl_b32 s{sT2}, s{sT2}, 12")
A(f"s_lshl_b32 s{sT3}, s{sJ}, 3")
A(f"s_add_u32 s{sT2}, s{sT2}, s{sT3}")
A(f"s_add_u32 s{sT2}, s{sT2}, {WS_H2 + 2048}")
A("v_lshlrev_b32 v5, 16, v3")
A("v_lshrrev_b32 v6, 1, v0")
A("v_and_b32 v6, 3, v6")
A("v_lshlrev_b32 v6, 12, v6")
A("v_add_u32 v5, v5, v6")
A(f"v_add_u32 {vr(vML)}, s{sT2}, v5")

A(f"s_cmp_eq_u32 s{sW}, 0")
A("s_cbranch_scc1 L_att_kw0")
A("s_waitcnt vmcnt(16)")
A("s_branch L_att_kwd")
LBL("L_att_kw0")
A(f"s_cmp_eq_u32 s{sJ}, 0")
A("s_cbranch_scc1 L_att_kw1")
A("s_waitcnt vmcnt(18)")
A("s_branch L_att_kwd")
LBL("L_att_kw1")
A("s_waitcnt vmcnt(19)")
LBL("L_att_kwd")
for t in range(2):
    for kk in range(8):
        A(f"ds_read_b128 {vr(KF+(t*8+kk)*4,4)}, {vr(vKA+kk)} offset:{t*8192}")
stamp(1)
A("s_waitcnt lgkmcnt(0)")
A("v_lshlrev_b32 v1, 4, v0")
A(f"s_lshl_b32 s{sT2}, s{sG}, 5")
A(f"s_add_u32 s{sT2}, s{sT2}, s{sJ}")
A(f"s_mul_i32 s{sT2}, s{sT2}, 14336")
A(f"s_mul_i32 s{sT3}, s{sW}, 896")
A(f"s_add_u32 s{sT2}, s{sT2}, s{sT3}")
A(f"v_add_u32 v2, s{sT2}, v1")
A(f"s_mul_i32 s{sT2}, s{sG}, 28")
A(f"s_add_u32 s{sT2}, s{sT2}, s{sJC}")
A(f"s_mul_i32 s{sC1}, s{sT2}, 7168")
A(f"s_add_u32 s{sC1}, s{sC1}, s{sT3}")
A(f"v_add_u32 v4, s{sC1}, v1")
A(f"s_mov_b64 exec, {sp(sM56)}")
for i in range(4):
    A(f"s_add_u32 m0, s{sLB}, {1024*i}")
    A(f"v_add_u32 v3, {3584*i}, v2")
    A(f"global_load_lds_dwordx4 v3, {sp(S_WO)} {W2POL}")
for i in range(2):
    A(f"s_add_u32 m0, s{sLB}, {1024*(4+i)}")
    A(f"v_add_u32 v3, {3584*i}, v4")
    A(f"global_load_lds_dwordx4 v3, {sp(S_W2)} {W2POL}")
A("s_mov_b64 exec, -1")
A(f"s_lshl_b32 s{sT3}, s{sT2}, 4")
A(f"s_mov_b32 s{sC1}, 3584")
A(f"v_mul_lo_u32 v2, s{sC1}, v0")
A(f"s_mul_i32 s{sC1}, s{sW}, 229376")
A(f"s_add_u32 s{sT3}, s{sT3}, s{sC1}")
A(f"v_add_u32 v2, s{sT3}, v2")
A(f"s_lshl_b32 s{sT2}, s{sW}, 10")
A(f"s_add_u32 m0, s{sT2}, {L_W1}")
A("s_nop 0")
A(f"global_load_lds_dwordx4 v2, {sp(S_W1)} {WPOL}")
A(f"s_cmp_eq_u32 s{sW}, 3")
A("s_cbranch_scc1 L_att_now1")
A(f"s_add_u32 m0, s{sT2}, {L_W1 + 4096}")
A(f"v_add_u32 v2, {229376*4}, v2")
A(f"global_load_lds_dwordx4 v2, {sp(S_W1)} {WPOL}")
LBL("L_att_now1")
if STAMP in (2, 3, 4):
    A("s_waitcnt vmcnt(0)")
    stamp(4)
if STAMP in (3, 4):
    stamp_flush(5, 0, vt, vt+1)
    A("s_endpgm")

LBL("L_att_layer")
A("s_barrier")
for kk in range(8):
    A(f"ds_read_b128 {vr(QF+4*kk,4)}, {vr(vQA)} offset:{64*kk}")
A(f"v_mov_b32 {vr(vt)}, {L_MODE}")
A(f"ds_read_b32 {vr(vt+1)}, {vr(vt)}")
A("s_waitcnt lgkmcnt(0)")
A(f"v_readfirstlane_b32 s{sMODE}, {vr(vt+1)}")
for kk in range(8):
    for t in range(2):
        c = "0" if kk == 0 else vr(SA+4*t, 4)
        A(f"v_mfma_f32_16x16x32_bf16 {vr(SA+4*t,4)}, {vr(QF+4*kk,4)}, {vr(KF+(t*8+kk)*4,4)}, {c}")
nop(9)
A(f"v_cndmask_b32 {vr(vt)}, {vr(SA)}, {vr(SA+1)}, {sp(sMH1)}")
A(f"v_cndmask_b32 {vr(vt+1)}, {vr(SA+4)}, {vr(SA+5)}, {sp(sMH1)}")
A(f"v_cndmask_b32 {vr(vt)}, {vr(vt)}, {vr(vt+1)}, {sp(sMT1)}")
A(f"v_cvt_pk_bf16_f32 {vr(vt)}, {vr(vt)}, {vr(vt)}")
A(f"v_lshlrev_b32 {vr(vt)}, 16, {vr(vt)}")
A(f"v_mul_f32 {vr(vt)}, 0x3d800000, {vr(vt)}")
A(f"v_mov_b32 {vr(vt+1)}, {vr(vt)}")
allreduce("v_max_f32", [vt+1], [vt+2], [8, 4, 2, 1], swap16=False, swap32=True)
A(f"ds_write_b32 {vr(vMW)}, {vr(vt+1)}")
A("s_waitcnt lgkmcnt(0)")
A("s_barrier")
A(f"ds_read2_b32 {vr(vt+2,2)}, {vr(vMR)} offset0:0 offset1:2")
A(f"ds_read2_b32 {vr(vt+4,2)}, {vr(vMR)} offset0:4 offset1:6")
A("s_waitcnt lgkmcnt(0)")
A(f"v_max_f32 {vr(vt+2)}, {vr(vt+2)}, {vr(vt+3)}")
A(f"v_max3_f32 {vr(vt+2)}, {vr(vt+2)}, {vr(vt+4)}, {vr(vt+5)}")
A(f"v_sub_f32 {vr(vt)}, {vr(vt)}, {vr(vt+2)}")
A(f"v_mul_f32 {vr(vt)}, s{sC0}, {vr(vt)}")
A(f"v_exp_f32 {vr(vt)}, {vr(vt)}")
nop(1)
A(f"v_cvt_pk_bf16_f32 {vr(vt+1)}, {vr(vt)}, {vr(vt)}")
A(f"ds_write_b16 {vr(vPW)}, {vr(vt+1)}")
allreduce("v_add_f32", [vt], [vt+2], [8, 4, 2, 1], swap16=False, swap32=True)
A(f"ds_write_b32 {vr(vMW)}, {vr(vt)} offset:32")
A(f"s_cmp_lg_u32 s{sLAYER}, 0")
A("s_cbranch_scc1 L_att_skipv")
A("s_waitcnt vmcnt(0)")
for t in range(4):
    for ks in range(4):
        for hh in range(2):
            A(f"ds_read_b64_tr_b16 {vr(VF+(t*4+ks)*4+2*hh,2)}, {vr(vVA+t)} offset:{ks*4096+hh*512}")
stamp(2)
A(f"s_cmp_lg_u32 s{sW}, 0")
A("s_cbranch_scc1 L_att_skipv")
A(f"v_mov_b32 {vr(vt+2)}, {L_NONCE}")
A(f"ds_read_b64 {vr(vt+4,2)}, {vr(vt+2)}")
A(f"s_lshl_b32 s{sT2}, s{sJ}, 6")
A(f"s_lshl_b32 s{sT3}, s{sG}, 3")
A(f"s_add_u32 s{sT2}, s{sT2}, s{sT3}")
A(f"s_add_u32 s{sT2}, s{sT2}, {WS_XR}")
A(f"v_mov_b32 {vr(vt+2)}, s{sT2}")
A("s_waitcnt lgkmcnt(0)")
A("s_mov_b64 exec, 1")
A(f"global_store_dwordx2 {vr(vt+2)}, {vr(vt+4,2)}, {sp(S_WS)} sc1")
A("s_mov_b64 exec, -1")
LBL("L_att_skipv")
A("s_waitcnt lgkmcnt(0)")
A("s_barrier")
for ks in range(4):
    A(f"ds_read_b128 {vr(PF+4*ks,4)}, {vr(vPA)} offset:{64*ks}")
A(f"ds_read2_b32 {vr(vt+2,2)}, {vr(vMR2)} offset0:0 offset1:2")
A(f"ds_read2_b32 {vr(vt+4,2)}, {vr(vMR2)} offset0:4 offset1:6")
A(f"ds_read2_b32 {vr(vt+6,2)}, {vr(vMR2)} offset0:8 offset1:10")
A(f"ds_read2_b32 {vr(vt+8,2)}, {vr(vMR2)} offset0:12 offset1:14")
A("s_waitcnt lgkmcnt(0)")
for ks in range(4):
    for t in range(4):
        c = "0" if ks == 0 else vr(OA+4*t, 4)
        A(f"v_mfma_f32_16x16x32_bf16 {vr(OA+4*t,4)}, {vr(VF+(t*4+ks)*4,4)}, {vr(PF+4*ks,4)}, {c}")
A(f"v_max_f32 {vr(vt+2)}, {vr(vt+2)}, {vr(vt+3)}")
A(f"v_max3_f32 {vr(vt+2)}, {vr(vt+2)}, {vr(vt+4)}, {vr(vt+5)}")
A(f"v_add_f32 {vr(vt+3)}, {vr(vt+6)}, {vr(vt+7)}")
A(f"v_add_f32 {vr(vt+4)}, {vr(vt+8)}, {vr(vt+9)}")
A(f"v_add_f32 {vr(vt+3)}, {vr(vt+3)}, {vr(vt+4)}")
A(f"v_bfi_b32 {vr(vt+2)}, 3, s{sTAG}, {vr(vt+2)}")
A(f"v_bfi_b32 {vr(vt+3)}, 3, s{sTAG}, {vr(vt+3)}")
for t in range(1, 4):
    A(f"v_add_u32 {vr(vt+3+t)}, {4096*t}, {vr(vOS)}")
nop(4)
for i in range(16):
    A(f"v_bfi_b32 {vr(OA+i)}, 3, s{sTAG}, {vr(OA+i)}")
A(f"s_mov_b64 exec, {sp(sM2)}")
st_local("global_store_dwordx4", [
    f"{vr(vOS)}, {vr(OA,4)}, {sp(S_WS)}",
    f"{vr(vt+4)}, {vr(OA+4,4)}, {sp(S_WS)}",
    f"{vr(vt+5)}, {vr(OA+8,4)}, {sp(S_WS)}",
    f"{vr(vt+6)}, {vr(OA+12,4)}, {sp(S_WS)}"])
A(f"s_mov_b64 exec, {sp(sM8)}")
st_local("global_store_dwordx2", [f"{vr(vML)}, {vr(vt+2,2)}, {sp(S_WS)}"])
A("s_mov_b64 exec, -1")
A(f"s_add_u32 s{sLAYER}, s{sLAYER}, 1")
A(f"s_lshl_b32 s{sTAG}, s{sTAG}, 1")
A(f"s_cmp_lt_u32 s{sLAYER}, 2")
A("s_cbranch_scc1 L_att_layer")
stamp(3)
stamp_flush(5, 0, vt, vt+1)
A("s_endpgm")

BF, AF, WO, W2, X = 16, 72, 128, 192, 224
XO, B2O, B1 = 232, 236, 255
T = 240
vZ = 80
LBL("L_ctrl")
for i in range(4):
    A(f"v_mov_b32 v{vZ+i}, 0")
for i in range(8):
    A(f"v_mov_b32 {vr(X+i)}, 0")
    A(f"v_mov_b32 {vr(AF+i)}, 0")
A("v_lshlrev_b32 v5, 4, v0")
A(f"s_lshl_b32 s{sT2}, s{sG}, 5")
A(f"s_add_u32 s{sT2}, s{sT2}, s{sJ}")
A(f"s_lshl_b32 s{sT3}, s{sT2}, 12")
A(f"s_add_u32 s{sT3}, s{sT3}, {WS_H2}")
A(f"v_add_u32 v6, s{sT3}, v5")
A(f"s_lshl_b32 s{sT3}, s{sT2}, 11")
A(f"s_add_u32 s{sT3}, s{sT3}, {WS_RS1}")
A(f"v_add_u32 v7, s{sT3}, v5")
A(f"v_add_u32 v8, {WS_RS2-WS_RS1}, v7")
A(f"s_lshl_b32 s{sT2}, s{sG}, 11")
A(f"s_lshl_b32 s{sT3}, s{sJ}, 6")
A(f"s_add_u32 s{sT2}, s{sT2}, s{sT3}")
A(f"v_add_u32 v9, s{sT2}, v5")
A(f"v_add_u32 v10, {WS_XG1}, v9")
A(f"v_add_u32 v11, {WS_XG2}, v9")
A(f"s_lshl_b32 s{sT2}, s{sJ}, 9")
A(f"s_lshl_b32 s{sT3}, s{sG}, 6")
A(f"s_add_u32 s{sT2}, s{sT2}, s{sT3}")
A(f"s_add_u32 s{sT2}, s{sT2}, {WS_XS1}")
A(f"v_add_u32 v12, s{sT2}, v5")
A(f"v_add_u32 v13, {WS_XS2-WS_XS1}, v12")
def local_clears(pol, z):
    for i in range(3):
        A(f"global_store_dwordx4 v6, {vr(z,4)}, {sp(S_WS)} offset:{1024*i} {pol}")
    for r in (7, 8):
        for i in range(2):
            A(f"global_store_dwordx4 v{r}, {vr(z,4)}, {sp(S_WS)} offset:{1024*i} {pol}")
    A(f"s_mov_b64 exec, {sp(sM4)}")
    for r in (9, 10, 11):
        A(f"global_store_dwordx4 v{r}, {vr(z,4)}, {sp(S_WS)} {pol}")
    A("s_mov_b64 exec, -1")


A(f"s_mov_b64 exec, {sp(sM56)}")
A(f"global_load_dwordx4 {vr(AF,4)}, v5, {sp(S_X)}")
A("s_mov_b64 exec, -1")
A("v_and_b32 v14, 3, v0")
A("v_lshlrev_b32 v14, 3, v14")
A(f"s_lshl_b32 s{sT2}, s{sJC}, 5")
A(f"v_add_u32 v14, s{sT2}, v14")
A(f"global_load_dwordx2 {vr(T,2)}, v14, {sp(S_X)}")
A(f"global_load_dwordx2 {vr(B2O,2)}, v14, {sp(S_B2)}")
A(f"s_mul_i32 s{sT2}, s{sG}, 28")
A(f"s_add_u32 s{sT2}, s{sT2}, s{sJC}")
A(f"s_lshl_b32 s{sT3}, s{sT2}, 4")
A(f"v_and_b32 {vr(T+3)}, 7, v0")
A(f"v_lshlrev_b32 {vr(T+3)}, 1, {vr(T+3)}")
A(f"v_add_u32 {vr(T+3)}, s{sT3}, {vr(T+3)}")
A(f"global_load_ushort {vr(B1)}, {vr(T+3)}, {sp(S_B1)}")
A("v_lshrrev_b32 v15, 1, v0")
A("v_lshlrev_b32 v15, 13, v15")
A(f"v_and_b32 {vr(T+2)}, 1, v0")
A(f"v_lshlrev_b32 {vr(T+2)}, 4, {vr(T+2)}")
A(f"v_add_u32 v15, v15, {vr(T+2)}")
A(f"s_lshl_b32 s{sT2}, s{sG}, 10")
A(f"s_lshl_b32 s{sT3}, s{sJ}, 5")
A(f"s_add_u32 s{sT2}, s{sT2}, s{sT3}")
A(f"v_add_u32 v15, s{sT2}, v15")
for i in range(14):
    A(f"s_mov_b32 m0, {L_WQ + 1024*i}")
    A(f"v_add_u32 {vr(T+2)}, {262144*i}, v15")
    A(f"global_load_lds_dwordx4 {vr(T+2)}, {sp(S_WQ)} {WPOL}")
local_clears("", vZ)
A(f"v_mov_b32 {vr(T+4)}, {L_REL}")
A(f"ds_write_b32 {vr(T+4)}, v{vZ}")
A("s_waitcnt lgkmcnt(0)")
A("s_barrier")
if STAMP == 4:
    stamp(5)
    A("s_waitcnt vmcnt(16)")
    stamp(6)
    A("s_waitcnt vmcnt(14)")
    stamp(7)
    A("s_waitcnt vmcnt(0)")
    stamp(8)
A(f"s_getreg_b32 s{sXCC}, hwreg(HW_REG_XCC_ID)")
A(f"s_and_b32 s{sXCC}, s{sXCC}, 15")
A(f"s_lshl_b32 s{sT2}, s{sG}, 4")
A(f"v_mov_b32 v15, s{sT2}")
A(f"s_mov_b32 s{sSPIN}, 0")
A(f"v_mov_b32 {vr(T+4)}, 0")
A(f"v_mov_b32 {vr(T+5)}, 0")
LBL("L_nonce")
A(f"global_load_dwordx2 {vr(T+2,2)}, v15, {sp(S_DBG)} sc1")
A(f"s_cmp_lt_u32 s{sSPIN}, {TMO}")
A("s_cbranch_scc1 L_nonce_nos")
A(f"global_load_dwordx2 {vr(T+4,2)}, v15, {sp(S_DBG)} offset:128 sc1")
LBL("L_nonce_nos")
A(f"s_add_u32 s{sSPIN}, s{sSPIN}, 1")
A(f"s_cmp_gt_u32 s{sSPIN}, {SPIN}")
A("s_cbranch_scc1 L_abort")
A("s_waitcnt vmcnt(0)")
A(f"v_or_b32 {vr(T+2)}, {vr(T+2)}, {vr(T+4)}")
A(f"v_or_b32 {vr(T+3)}, {vr(T+3)}, {vr(T+5)}")
A("s_nop 0")
A(f"v_readfirstlane_b32 s{sNL}, {vr(T+2)}")
A(f"v_readfirstlane_b32 s{sNH}, {vr(T+3)}")
A("s_nop 1")
A(f"s_cmp_lt_i32 s{sNH}, 0")
A("s_cbranch_scc0 L_nonce")
stamp(1)
A(f"s_or_b32 s{sT2}, s{sNL}, s{sXCC}")
A(f"v_mov_b32 {vr(T+2)}, s{sT2}")
A(f"v_mov_b32 {vr(T+3)}, s{sNH}")
A(f"s_lshl_b32 s{sT2}, s{sG}, 8")
A(f"s_lshl_b32 s{sT3}, s{sJ}, 3")
A(f"s_add_u32 s{sT2}, s{sT2}, s{sT3}")
A(f"s_add_u32 s{sT2}, s{sT2}, {WS_HF}")
A(f"v_mov_b32 v15, s{sT2}")
A("s_mov_b64 exec, 1")
A(f"global_store_dwordx2 v15, {vr(T+2,2)}, {sp(S_WS)}")
A("s_mov_b64 exec, -1")
A(f"v_mov_b32 {vr(T+4)}, {L_NONCE}")
A(f"v_mov_b32 {vr(T+2)}, s{sNL}")
A(f"ds_write_b64 {vr(T+4)}, {vr(T+2,2)}")
A("v_lshrrev_b32 v2, 4, v0")
A("v_and_b32 v1, 15, v0")
A("v_lshrrev_b32 v3, 2, v1")
A("v_and_b32 v4, 3, v0")
A("v_lshlrev_b32 v15, 3, v2")
A("v_add_u32 v15, v15, v3")
vWQA, vW1A, vXNW, vXNR = T+10, T+11, T+12, T+13
A(f"v_lshlrev_b32 {vr(vWQA)}, 5, v15")
A("v_lshlrev_b32 v3, 3, v4")
A(f"v_add_u32 {vr(vWQA)}, {vr(vWQA)}, v3")
A(f"v_add_u32 {vr(vWQA)}, {L_WQ}, {vr(vWQA)}")
A(f"v_lshlrev_b32 {vr(vW1A)}, 4, v15")
A("v_and_b32 v3, 1, v0")
A("v_lshlrev_b32 v3, 3, v3")
A(f"v_add_u32 {vr(vW1A)}, {vr(vW1A)}, v3")
A(f"v_add_u32 {vr(vW1A)}, {L_W1}, {vr(vW1A)}")
A(f"v_add_u32 {vr(vXNW)}, {L_XN}, v5")
A(f"v_lshlrev_b32 {vr(vXNR)}, 4, v2")
A(f"v_add_u32 {vr(vXNR)}, {L_XN}, {vr(vXNR)}")


def load_bfrags(addr, kstep, hstep):
    for kk in range(14):
        for hh in range(2):
            A(f"ds_read_b64_tr_b16 {vr(BF+4*kk+2*hh,2)}, {vr(addr)} offset:{kk*kstep+hh*hstep}")


load_bfrags(vWQA, 1024, 128)
for i in range(4):
    A(f"v_lshlrev_b32 {vr(X+2*i)}, 16, {vr(AF+i)}")
    A(f"v_and_b32 {vr(X+2*i+1)}, 0xffff0000, {vr(AF+i)}")
for i in range(2):
    A(f"v_lshlrev_b32 {vr(XO+2*i)}, 16, {vr(T+i)}")
    A(f"v_and_b32 {vr(XO+2*i+1)}, 0xffff0000, {vr(T+i)}")


def layernorm(xin, xout, pk, t):
    s1, s2, a, b = t, t+1, t+2, t+3
    A(f"v_add_f32 {vr(s1)}, {vr(xin)}, {vr(xin+1)}")
    A(f"v_mul_f32 {vr(s2)}, {vr(xin)}, {vr(xin)}")
    A(f"v_fmac_f32 {vr(s2)}, {vr(xin+1)}, {vr(xin+1)}")
    for i in range(2, 8):
        A(f"v_add_f32 {vr(s1)}, {vr(s1)}, {vr(xin+i)}")
        A(f"v_fmac_f32 {vr(s2)}, {vr(xin+i)}, {vr(xin+i)}")
    allreduce("v_add_f32", [s1, s2], [a, b], [8, 4, 2, 1])
    A(f"v_mul_f32 {vr(s1)}, 0x3b124925, {vr(s1)}")
    A(f"v_mul_f32 {vr(s2)}, 0x3b124925, {vr(s2)}")
    A(f"v_fma_f32 {vr(s2)}, -{vr(s1)}, {vr(s1)}, {vr(s2)}")
    A(f"v_max_f32 {vr(s2)}, 0, {vr(s2)}")
    A(f"v_cvt_pk_bf16_f32 {vr(a)}, {vr(s1)}, {vr(s2)}")
    A(f"v_lshlrev_b32 {vr(s1)}, 16, {vr(a)}")
    A(f"v_and_b32 {vr(s2)}, 0xffff0000, {vr(a)}")
    A(f"v_add_f32 {vr(s2)}, 0x3727c5ac, {vr(s2)}")
    A(f"v_cvt_pk_bf16_f32 {vr(a)}, {vr(s2)}, {vr(s2)}")
    A(f"v_lshlrev_b32 {vr(s2)}, 16, {vr(a)}")
    A(f"v_sqrt_f32 {vr(s2)}, {vr(s2)}")
    nop(1)
    A(f"v_cvt_pk_bf16_f32 {vr(a)}, {vr(s2)}, {vr(s2)}")
    A(f"v_lshlrev_b32 {vr(s2)}, 16, {vr(a)}")
    A(f"v_rcp_f32 {vr(b)}, {vr(s2)}")
    d0, d1, q0, q1 = t+4, t+5, t+6, t+7
    for i in range(4):
        A(f"v_sub_f32 {vr(d0)}, {vr(xin+2*i)}, {vr(s1)}")
        A(f"v_sub_f32 {vr(d1)}, {vr(xin+2*i+1)}, {vr(s1)}")
        A(f"v_cvt_pk_bf16_f32 {vr(a)}, {vr(d0)}, {vr(d1)}")
        A(f"v_lshlrev_b32 {vr(d0)}, 16, {vr(a)}")
        A(f"v_and_b32 {vr(d1)}, 0xffff0000, {vr(a)}")
        A(f"v_mul_f32 {vr(q0)}, {vr(d0)}, {vr(b)}")
        A(f"v_mul_f32 {vr(q1)}, {vr(d1)}, {vr(b)}")
        A(f"v_fma_f32 {vr(d0)}, -{vr(q0)}, {vr(s2)}, {vr(d0)}")
        A(f"v_fma_f32 {vr(d1)}, -{vr(q1)}, {vr(s2)}, {vr(d1)}")
        A(f"v_fmac_f32 {vr(q0)}, {vr(d0)}, {vr(b)}")
        A(f"v_fmac_f32 {vr(q1)}, {vr(d1)}, {vr(b)}")
        A(f"v_cvt_pk_bf16_f32 {vr(pk+i)}, {vr(q0)}, {vr(q1)}")
        if xout is not None:
            A(f"v_lshlrev_b32 {vr(xout+2*i)}, 16, {vr(pk+i)}")
            A(f"v_and_b32 {vr(xout+2*i+1)}, 0xffff0000, {vr(pk+i)}")


def matvec(pk, acc):
    A(f"s_mov_b64 exec, {sp(sM56)}")
    A(f"ds_write_b128 {vr(vXNW)}, {vr(pk,4)}")
    A("s_mov_b64 exec, -1")
    A("s_waitcnt lgkmcnt(0)")
    for kk in range(14):
        A(f"ds_read_b128 {vr(AF+4*kk,4)}, {vr(vXNR)} offset:{64*kk}")
    for kk in range(14):
        if kk % 2 == 0:
            A(f"s_waitcnt lgkmcnt({max(0, 12-kk)})")
        c = "0" if kk == 0 else vr(acc, 4)
        A(f"v_mfma_f32_16x16x32_bf16 {vr(acc,4)}, {vr(AF+4*kk,4)}, {vr(BF+4*kk,4)}, {c}")
    nop(9)


PK = T
ACC = T+4
LNT = AF

LBL("L_ctrl_layer")
A("s_waitcnt lgkmcnt(0)")
layernorm(X, None, PK, LNT)
A(f"s_mov_b64 exec, {sp(sM56)}")
A("s_mov_b64 exec, -1")
matvec(PK, ACC)
A(f"v_cvt_pk_bf16_f32 {vr(ACC)}, {vr(ACC)}, {vr(ACC)}")
A(f"v_lshlrev_b32 {vr(ACC)}, 16, {vr(ACC)}")
A(f"v_or_b32 {vr(ACC)}, s{sTAG}, {vr(ACC)}")
stamp(2)
if STAMP == 4:
    stamp_flush(11, 0, T+8, T+9)
    A("s_endpgm")
A(f"v_mul_u32_u24 {vr(T+8)}, 12, v0")
A(f"v_sub_u32 {vr(T+8)}, v9, {vr(T+8)}")
A(f"s_lshl_b32 s{sT2}, s{sG}, 11")
A(f"v_lshlrev_b32 {vr(T+9)}, 5, v0")
A(f"v_add_u32 {vr(T+9)}, s{sT2}, {vr(T+9)}")
A(f"s_cmp_lg_u32 s{sLAYER}, 0")
A("s_cbranch_scc1 L_ctrl_pubq")
A(f"s_mov_b64 exec, {sp(sM16)}")
A(f"global_store_dword {vr(T+8)}, {vr(ACC)}, {sp(S_WS)}")
A("s_mov_b64 exec, -1")
A(f"s_lshl_b32 s{sT2}, s{sG}, 8")
A(f"s_add_u32 s{sT2}, s{sT2}, {WS_HF}")
A("v_and_b32 v15, 31, v0")
A("v_lshlrev_b32 v15, 3, v15")
A(f"v_add_u32 v15, s{sT2}, v15")
A(f"v_add_u32 {vr(AF+14)}, {WS_HS-WS_HF}, v15")
A(f"s_mov_b32 s{sSPIN}, 0")
A(f"s_mov_b32 s{sC1}, 0")
A(f"s_mov_b32 s{sC2}, 0")
H = AF+8
A(f"v_mov_b32 {vr(H+2)}, 0")
A(f"v_mov_b32 {vr(H+3)}, 0")
LBL("L_hello")
A(f"global_load_dwordx2 {vr(H,2)}, v15, {sp(S_WS)} sc1")
A(f"s_cmp_eq_u32 s{sC1}, 0")
A("s_cbranch_scc1 L_hello_nos")
A(f"global_load_dwordx2 {vr(H+2,2)}, {vr(AF+14)}, {sp(S_WS)} sc1")
LBL("L_hello_nos")
A(f"global_load_dwordx4 {vr(AF,4)}, {vr(T+9)}, {sp(S_WS)} sc1")
A(f"global_load_dwordx4 {vr(AF+4,4)}, {vr(T+9)}, {sp(S_WS)} offset:16 sc1")
A(f"s_add_u32 s{sSPIN}, s{sSPIN}, 1")
A(f"s_cmp_gt_u32 s{sSPIN}, {SPIN}")
A("s_cbranch_scc1 L_abort")
A("s_waitcnt vmcnt(0)")
A(f"v_and_b32 {vr(H+4)}, s{sTAG}, {vr(AF)}")
for r in range(AF+1, AF+8):
    A(f"v_and_b32 {vr(H+4)}, {vr(H+4)}, {vr(r)}")
A(f"v_cmp_ne_u32 vcc, 0, {vr(H+4)}")
A("s_nop 1")
A("s_cmp_eq_u64 vcc, exec")
A(f"s_cselect_b32 s{sT2}, s{sC2}, 0")
A(f"s_cmp_lg_u32 s{sT2}, 0")
A("s_cbranch_scc1 L_fast")
A(f"v_and_b32 {vr(H+4)}, -16, {vr(H)}")
A(f"v_xor_b32 {vr(H+4)}, s{sNL}, {vr(H+4)}")
A(f"v_xor_b32 {vr(H+5)}, s{sNH}, {vr(H+1)}")
A(f"v_or_b32 {vr(H+4)}, {vr(H+4)}, {vr(H+5)}")
A(f"v_cmp_eq_u32 {sp(sT0)}, 0, {vr(H+4)}")
A(f"v_and_b32 {vr(H+4)}, -16, {vr(H+2)}")
A(f"v_xor_b32 {vr(H+4)}, s{sNL}, {vr(H+4)}")
A(f"v_xor_b32 {vr(H+5)}, s{sNH}, {vr(H+3)}")
A(f"v_or_b32 {vr(H+4)}, {vr(H+4)}, {vr(H+5)}")
A(f"v_cmp_eq_u32 vcc, 0, {vr(H+4)}")
A("s_nop 1")
A(f"v_cndmask_b32 {vr(H)}, {vr(H+2)}, {vr(H)}, {sp(sT0)}")
A(f"s_or_b64 {sp(sT0)}, {sp(sT0)}, vcc")
A(f"v_and_b32 {vr(H)}, 15, {vr(H)}")
A(f"v_cmp_ne_u32 vcc, s{sXCC}, {vr(H)}")
A("s_nop 1")
A(f"s_and_b64 vcc, vcc, {sp(sT0)}")
A("s_cmp_lg_u64 vcc, 0")
A("s_cbranch_scc1 L_slow")
A(f"s_cmp_eq_u64 {sp(sT0)}, exec")
A(f"s_cselect_b32 s{sC2}, 1, 0")
A(f"s_cmp_lt_u32 s{sSPIN}, {TMO}")
A("s_cbranch_scc1 L_hello")
A(f"s_cmp_lg_u32 s{sC1}, 0")
A("s_cbranch_scc1 L_hello")
A(f"s_mov_b32 s{sC1}, 1")


def own_record(wsbase):
    A(f"s_or_b32 s{sT2}, s{sNL}, s{sXCC}")
    A(f"v_mov_b32 {vr(H+4)}, s{sT2}")
    A(f"v_mov_b32 {vr(H+5)}, s{sNH}")
    A(f"s_lshl_b32 s{sT2}, s{sG}, 8")
    A(f"s_lshl_b32 s{sT3}, s{sJ}, 3")
    A(f"s_add_u32 s{sT2}, s{sT2}, s{sT3}")
    A(f"s_add_u32 s{sT2}, s{sT2}, {wsbase}")
    A(f"v_mov_b32 {vr(H+7)}, s{sT2}")
    A("s_mov_b64 exec, 1")
    A(f"global_store_dwordx2 {vr(H+7)}, {vr(H+4,2)}, {sp(S_WS)} sc1")
    A("s_mov_b64 exec, -1")


own_record(WS_HS)
A("s_branch L_hello")
LBL("L_slow")
own_record(WS_HS)
for i in range(4):
    A(f"v_mov_b32 {vr(AF+16+i)}, 0")
local_clears("sc1", AF+16)
A("s_waitcnt vmcnt(0)")
own_record(WS_HZ)
A(f"v_add_u32 {vr(AF+14)}, {WS_HZ-WS_HF}, v15")
A(f"s_mov_b32 s{sSPIN}, 0")
LBL("L_hello2")
A(f"global_load_dwordx2 {vr(H,2)}, {vr(AF+14)}, {sp(S_WS)} sc1")
A(f"s_add_u32 s{sSPIN}, s{sSPIN}, 1")
A(f"s_cmp_gt_u32 s{sSPIN}, {SPIN}")
A("s_cbranch_scc1 L_abort")
A("s_waitcnt vmcnt(0)")
A(f"v_and_b32 {vr(H+4)}, -16, {vr(H)}")
A(f"v_xor_b32 {vr(H+4)}, s{sNL}, {vr(H+4)}")
A(f"v_xor_b32 {vr(H+5)}, s{sNH}, {vr(H+1)}")
A(f"v_or_b32 {vr(H+4)}, {vr(H+4)}, {vr(H+5)}")
A(f"v_cmp_eq_u32 vcc, 0, {vr(H+4)}")
A("s_nop 1")
A("s_cmp_eq_u64 vcc, exec")
A("s_cbranch_scc0 L_hello2")
A(f"s_mov_b32 s{sMODE}, 0")
A(f"v_mov_b32 {vr(H)}, {L_MODE}")
A(f"v_mov_b32 {vr(H+1)}, 0")
A(f"ds_write_b32 {vr(H)}, {vr(H+1)}")
LBL("L_ctrl_pubq")
A(f"s_mov_b64 exec, {sp(sM16)}")
st_local("global_store_dword", [f"{vr(T+8)}, {vr(ACC)}, {sp(S_WS)}"])
A("s_mov_b64 exec, -1")
poll([f"global_load_dwordx4 {vr(AF,4)}, {vr(T+9)}, {sp(S_WS)}",
      f"global_load_dwordx4 {vr(AF+4,4)}, {vr(T+9)}, {sp(S_WS)} offset:16"],
     list(range(AF, AF+8)), T+8)
A("s_branch L_ctrl_gotq")
LBL("L_fast")
A(f"s_mov_b32 s{sMODE}, 1")
A(f"v_mov_b32 {vr(H)}, {L_MODE}")
A(f"v_mov_b32 {vr(H+1)}, 1")
A(f"ds_write_b32 {vr(H)}, {vr(H+1)}")
LBL("L_ctrl_gotq")
A(f"v_mov_b32 {vr(H)}, {L_REL}")
A(f"v_mov_b32 {vr(H+1)}, 1")
A(f"ds_write_b32 {vr(H)}, {vr(H+1)}")
A(f"s_mov_b32 s{sC3}, 0x07060302")
for i in range(4):
    A(f"v_perm_b32 {vr(AF+8+i)}, {vr(AF+2*i+1)}, {vr(AF+2*i)}, s{sC3}")
A(f"v_add_u32 v15, {L_Q}, v5")
A(f"ds_write_b128 v15, {vr(AF+8,4)}")
A("s_waitcnt lgkmcnt(0)")
stamp(3)
A("s_barrier")
A(f"s_cmp_eq_u32 s{sLAYER}, 0")
A("s_cbranch_scc1 L_ctrl_b1")
load_bfrags(vW1A, 512, 64)
LBL("L_ctrl_b1")
A("s_barrier")
A("s_waitcnt lgkmcnt(0)")
A("s_barrier")
stamp(4)
A(f"s_cmp_lg_u32 s{sLAYER}, 0")
A("s_cbranch_scc1 L_ctrl_noperm")
A(f"v_add_u32 v15, 65536, v5")
for r in range(16):
    base = "v5" if (r % 4) < 2 else "v15"
    A(f"ds_read_b128 {vr(WO+4*r,4)}, {base} offset:{(r%2)*32768 + (r//4)*1024}")
for r in range(8):
    base = "v5" if (r % 4) < 2 else "v15"
    A(f"ds_read_b128 {vr(W2+4*r,4)}, {base} offset:{(r%2)*32768 + (4 + r//4)*1024}")
A("s_waitcnt lgkmcnt(0)")
load_bfrags(vW1A, 512, 64)
A(f"v_and_b32 {vr(B2O+3)}, 0xffff0000, {vr(B2O+1)}")
A(f"v_lshlrev_b32 {vr(B2O+2)}, 16, {vr(B2O+1)}")
A(f"v_and_b32 {vr(B2O+1)}, 0xffff0000, {vr(B2O)}")
A(f"v_lshlrev_b32 {vr(B2O)}, 16, {vr(B2O)}")
A(f"v_lshlrev_b32 {vr(B1)}, 16, {vr(B1)}")
A(f"s_mov_b32 s{sC1}, 0x05040100")
A(f"s_mov_b32 s{sC3}, 0x07060302")
for base, npairs in ((WO, 8), (W2, 4)):
    for p in range(npairs):
        for k in range(4):
            ra = base + 8*p + k
            rb = base + 8*p + 4 + k
            A(f"v_perm_b32 {vr(T+8)}, {vr(rb)}, {vr(ra)}, s{sC1}")
            A(f"v_perm_b32 {vr(rb)}, {vr(rb)}, {vr(ra)}, s{sC3}")
            A(f"v_mov_b32 {vr(ra)}, {vr(T+8)}")
LBL("L_ctrl_noperm")
A("v_lshrrev_b32 v15, 2, v0")
A("v_lshlrev_b32 v15, 3, v15")
A("v_sub_u32 v15, v15, v5")
A("v_add_u32 v15, v15, v6")
oa, ob, mla, mlb = AF, AF+4, AF+8, AF+10
poll([f"global_load_dwordx4 {vr(oa,4)}, v6, {sp(S_WS)}",
      f"global_load_dwordx4 {vr(ob,4)}, v6, {sp(S_WS)} offset:1024",
      f"global_load_dwordx2 {vr(mla,2)}, v15, {sp(S_WS)} offset:2048",
      f"global_load_dwordx2 {vr(mlb,2)}, v15, {sp(S_WS)} offset:2176"],
     list(range(AF, AF+12)), T+8)
stamp(5)
mx, wa, wb, ls = AF+12, AF+13, AF+14, AF+15
A(f"v_max_f32 {vr(mx)}, {vr(mla)}, {vr(mlb)}")
allreduce("v_max_f32", [mx], [AF+16], [4, 8])
A(f"v_sub_f32 {vr(wa)}, {vr(mla)}, {vr(mx)}")
A(f"v_sub_f32 {vr(wb)}, {vr(mlb)}, {vr(mx)}")
A(f"v_mul_f32 {vr(wa)}, s{sC0}, {vr(wa)}")
A(f"v_mul_f32 {vr(wb)}, s{sC0}, {vr(wb)}")
A(f"v_exp_f32 {vr(wa)}, {vr(wa)}")
A(f"v_exp_f32 {vr(wb)}, {vr(wb)}")
nop(1)
A(f"v_mul_f32 {vr(ls)}, {vr(wa)}, {vr(mla+1)}")
A(f"v_fmac_f32 {vr(ls)}, {vr(wb)}, {vr(mlb+1)}")
for i in range(4):
    A(f"v_mul_f32 {vr(oa+i)}, {vr(wa)}, {vr(oa+i)}")
    A(f"v_fmac_f32 {vr(oa+i)}, {vr(wb)}, {vr(ob+i)}")
allreduce("v_add_f32", [ls, oa, oa+1, oa+2, oa+3], list(range(AF+16, AF+21)), [4, 8])
A(f"v_rcp_f32 {vr(ls)}, {vr(ls)}")
nop(1)
for i in range(4):
    A(f"v_mul_f32 {vr(oa+i)}, {vr(oa+i)}, {vr(ls)}")
A(f"v_cvt_pk_bf16_f32 {vr(ob)}, {vr(oa)}, {vr(oa+1)}")
A(f"v_cvt_pk_bf16_f32 {vr(ob+1)}, {vr(oa+2)}, {vr(oa+3)}")
dump([ob, ob+1], 0, 15)
nop(1)
for qq in range(4):
    for p in range(2):
        A(f"v_readlane_b32 s{sPK+2*qq+p}, {vr(ob+p)}, {qq}")
nop(2)
PA = AF+24


def dotpartial(base, npairs):
    for p in range(npairs):
        for c in range(8):
            w = base + 8*p + (c >> 1) + 4*(c & 1)
            if p == 0:
                A(f"v_dot2_f32_bf16 {vr(PA+c)}, s{sPK+p}, {vr(w)}, 0")
            else:
                A(f"v_dot2_f32_bf16 {vr(PA+c)}, s{sPK+p}, {vr(w)}, {vr(PA+c)}")
    nop(3)
    for c in range(8):
        A(f"v_bfi_b32 {vr(PA+c)}, 3, s{sTAG}, {vr(PA+c)}")


def publish_rs(wsbase):
    A(f"s_lshl_b32 s{sT2}, s{sG}, 16")
    A(f"s_lshl_b32 s{sT3}, s{sJ}, 6")
    A(f"s_add_u32 s{sT2}, s{sT2}, s{sT3}")
    A(f"s_add_u32 s{sT2}, s{sT2}, {wsbase}")
    A("v_lshrrev_b32 v15, 1, v0")
    A("v_lshlrev_b32 v15, 11, v15")
    A(f"v_and_b32 {vr(T+8)}, 1, v0")
    A(f"v_lshlrev_b32 {vr(T+8)}, 5, {vr(T+8)}")
    A(f"v_add3_u32 v15, v15, {vr(T+8)}, s{sT2}")
    A(f"s_mov_b64 exec, {sp(sM56)}")
    st_local("global_store_dwordx4", [f"v15, {vr(PA,4)}, {sp(S_WS)}",
                                      f"v15, {vr(PA+4,4)}, {sp(S_WS)} offset:16"])
    A("s_mov_b64 exec, -1")


dotpartial(WO, 8)
publish_rs(WS_RS1)
stamp(6)
A(f"s_cmp_ge_u32 s{sJ}, 28")
A("s_cbranch_scc1 L_ctrl_skipmlp")


def reduce_stage(vinbox, vxs, nprod, wsxs):
    a, b = AF, AF+4
    if nprod == 32:
        poll([f"global_load_dwordx4 {vr(a,4)}, v{vinbox}, {sp(S_WS)}",
              f"global_load_dwordx4 {vr(b,4)}, v{vinbox}, {sp(S_WS)} offset:1024"],
             list(range(AF, AF+8)), T+8)
    else:
        for i in range(4):
            A(f"v_mov_b32 {vr(b+i)}, s{sTAG}")
        l = newlab("poll")
        A(f"s_mov_b32 s{sSPIN}, 0")
        LBL(l)
        A(f"global_load_dwordx4 {vr(a,4)}, v{vinbox}, {sp(S_WS)} sc1")
        A("s_mov_b32 exec_hi, 0xffff")
        A(f"global_load_dwordx4 {vr(b,4)}, v{vinbox}, {sp(S_WS)} offset:1024 sc1")
        A("s_mov_b64 exec, -1")
        A(f"s_add_u32 s{sSPIN}, s{sSPIN}, 1")
        A(f"s_cmp_gt_u32 s{sSPIN}, {SPIN}")
        A("s_cbranch_scc1 L_abort")
        A("s_waitcnt vmcnt(0)")
        A(f"v_and_b32 {vr(T+8)}, s{sTAG}, {vr(a)}")
        for r in range(AF+1, AF+8):
            A(f"v_and_b32 {vr(T+8)}, {vr(T+8)}, {vr(r)}")
        A(f"v_cmp_ne_u32 vcc, 0, {vr(T+8)}")
        A("s_nop 1")
        A("s_cmp_eq_u64 vcc, exec")
        A(f"s_cbranch_scc0 {l}")
    for i in range(4):
        A(f"v_add_f32 {vr(a+i)}, {vr(a+i)}, {vr(b+i)}")
    allreduce("v_add_f32", [a, a+1, a+2, a+3], list(range(AF+8, AF+12)), [4, 8])
    for i in range(4):
        A(f"v_bfi_b32 {vr(a+i)}, 3, s{sTAG}, {vr(a+i)}")
    A(f"s_mov_b64 exec, {sp(sM4)}")
    A(f"global_store_dwordx4 v{vxs}, {vr(a,4)}, {sp(S_WS)} sc1")
    A("s_mov_b64 exec, -1")
    A(f"s_lshl_b32 s{sT2}, s{sJ}, 9")
    A(f"s_add_u32 s{sT2}, s{sT2}, {wsxs}")
    A(f"v_add_u32 v15, s{sT2}, v5")
    for i in range(4):
        A(f"v_mov_b32 {vr(b+i)}, 0")
    A(f"s_mov_b64 exec, {sp(sM32)}")
    poll([f"global_load_dwordx4 {vr(b,4)}, v15, {sp(S_WS)}"], list(range(b, b+4)), T+8)
    A("s_mov_b64 exec, -1")
    allreduce("v_add_f32", [b, b+1, b+2, b+3], list(range(AF+8, AF+12)), [4, 8], swap16=True, swap32=False)
    return b


def bf16round(regs, tmp):
    for i in range(0, len(regs), 2):
        A(f"v_cvt_pk_bf16_f32 {vr(tmp)}, {vr(regs[i])}, {vr(regs[i+1])}")
        A(f"v_lshlrev_b32 {vr(regs[i])}, 16, {vr(tmp)}")
        A(f"v_and_b32 {vr(regs[i+1])}, 0xffff0000, {vr(tmp)}")


def gather_x(wsxg):
    A(f"s_lshl_b32 s{sT2}, s{sG}, 11")
    A(f"s_add_u32 s{sT2}, s{sT2}, {wsxg}")
    A("v_lshlrev_b32 v15, 5, v0")
    A(f"v_add_u32 v15, s{sT2}, v15")
    A(f"s_mov_b64 exec, {sp(sM56)}")
    poll([f"global_load_dwordx4 {vr(X,4)}, v15, {sp(S_WS)}",
          f"global_load_dwordx4 {vr(X+4,4)}, v15, {sp(S_WS)} offset:16"],
         list(range(X, X+8)), T+8)
    for i in range(8):
        A(f"v_and_b32 {vr(X+i)}, 0xffff0000, {vr(X+i)}")
    A("s_mov_b64 exec, -1")


A(f"s_cmp_lg_u32 s{sLAYER}, 0")
A("s_cbranch_scc1 L_xr_ok")
A("v_lshlrev_b32 v15, 4, v0")
A(f"s_lshl_b32 s{sT2}, s{sJ}, 6")
A(f"s_add_u32 s{sT2}, s{sT2}, {WS_XR}")
A(f"v_lshlrev_b32 {vr(AF+6)}, 3, v0")
A(f"v_add_u32 {vr(AF+6)}, s{sT2}, {vr(AF+6)}")
A(f"s_mov_b64 exec, {sp(sM8)}")
A(f"s_mov_b32 s{sSPIN}, 0")
LBL("L_xr")
A(f"global_load_dwordx2 {vr(AF,2)}, v15, {sp(S_DBG)} offset:128 sc1")
A(f"global_load_dwordx2 {vr(AF+2,2)}, {vr(AF+6)}, {sp(S_WS)} sc1")
A(f"s_add_u32 s{sSPIN}, s{sSPIN}, 1")
A(f"s_cmp_gt_u32 s{sSPIN}, {SPIN}")
A("s_cbranch_scc1 L_abort")
A("s_waitcnt vmcnt(0)")
A(f"v_xor_b32 {vr(AF+4)}, {vr(AF)}, {vr(AF+2)}")
A(f"v_xor_b32 {vr(AF+5)}, {vr(AF+1)}, {vr(AF+3)}")
A(f"v_or_b32 {vr(AF+4)}, {vr(AF+4)}, {vr(AF+5)}")
A(f"v_cmp_eq_u32 {sp(sT0)}, 0, {vr(AF+4)}")
A(f"v_cmp_gt_i32 vcc, 0, {vr(AF+1)}")
A("s_nop 1")
A(f"s_and_b64 vcc, vcc, {sp(sT0)}")
A("s_cmp_eq_u64 vcc, exec")
A("s_cbranch_scc0 L_xr")
A("s_mov_b64 exec, -1")
LBL("L_xr_ok")
r = reduce_stage(7, 12, 32, WS_XS1)
bf16round([r, r+1, r+2, r+3], T+8)
for i in range(4):
    A(f"v_add_f32 {vr(XO+i)}, {vr(XO+i)}, {vr(r+i)}")
bf16round([XO, XO+1, XO+2, XO+3], T+8)
for i in range(4):
    A(f"v_or_b32 {vr(r+i)}, s{sTAG}, {vr(XO+i)}")
A(f"s_mov_b64 exec, {sp(sM4)}")
st_local("global_store_dwordx4", [f"v10, {vr(r,4)}, {sp(S_WS)}"])
A("s_mov_b64 exec, -1")
stamp(7)
gather_x(WS_XG1)
dump(list(range(X, X+8)), 2, 15)
Y = AF+16
layernorm(X, Y, PK, LNT)
A(f"s_mov_b64 exec, {sp(sM56)}")
A("s_not_b64 exec, exec")
for i in range(8):
    A(f"v_mov_b32 {vr(Y+i)}, 0")
A("s_mov_b64 exec, -1")
layernorm(Y, None, PK, LNT)
matvec(PK, ACC)
h = ACC
A(f"v_cvt_pk_bf16_f32 {vr(h)}, {vr(h)}, {vr(h)}")
A(f"v_lshlrev_b32 {vr(h)}, 16, {vr(h)}")
A(f"v_add_f32 {vr(h)}, {vr(h)}, {vr(B1)}")
A(f"v_cvt_pk_bf16_f32 {vr(h)}, {vr(h)}, {vr(h)}")
A(f"v_lshlrev_b32 {vr(h)}, 16, {vr(h)}")
A(f"v_mul_f32 {vr(h+1)}, {vr(h)}, {vr(h)}")
A(f"v_mul_f32 {vr(h+1)}, {vr(h+1)}, {vr(h)}")
A(f"v_mov_b32 {vr(h+2)}, {vr(h)}")
A(f"v_fmac_f32 {vr(h+2)}, 0x3d372713, {vr(h+1)}")
A(f"v_mul_f32 {vr(h+2)}, 0x40135761, {vr(h+2)}")
A(f"v_exp_f32 {vr(h+2)}, {vr(h+2)}")
nop(1)
A(f"v_add_f32 {vr(h+2)}, 1.0, {vr(h+2)}")
A(f"v_rcp_f32 {vr(h+2)}, {vr(h+2)}")
nop(1)
A(f"v_sub_f32 {vr(h+2)}, 1.0, {vr(h+2)}")
A(f"v_mul_f32 {vr(h)}, {vr(h)}, {vr(h+2)}")
A(f"v_cvt_pk_bf16_f32 {vr(h)}, {vr(h)}, {vr(h)}")
dump([h], 12, 15)
nop(1)
for p in range(4):
    A(f"v_readlane_b32 s{sRL}, {vr(h)}, {2*p}")
    A(f"v_readlane_b32 s{sRL+1}, {vr(h)}, {2*p+1}")
    nop(1)
    A(f"s_pack_ll_b32_b16 s{sPK+p}, s{sRL}, s{sRL+1}")
nop(2)
dotpartial(W2, 4)
publish_rs(WS_RS2)
stamp(8)
r = reduce_stage(8, 13, 28, WS_XS2)
bf16round([r, r+1, r+2, r+3], T+8)
for i in range(4):
    A(f"v_add_f32 {vr(r+i)}, {vr(r+i)}, {vr(B2O+i)}")
bf16round([r, r+1, r+2, r+3], T+8)
for i in range(4):
    A(f"v_add_f32 {vr(XO+i)}, {vr(XO+i)}, {vr(r+i)}")
bf16round([XO, XO+1, XO+2, XO+3], T+8)
A(f"s_cmp_lg_u32 s{sLAYER}, 0")
A("s_cbranch_scc1 L_ctrl_final")
for i in range(4):
    A(f"v_or_b32 {vr(r+i)}, s{sTAG}, {vr(XO+i)}")
A(f"s_mov_b64 exec, {sp(sM4)}")
st_local("global_store_dwordx4", [f"v11, {vr(r,4)}, {sp(S_WS)}"])
A("s_mov_b64 exec, -1")
LBL("L_ctrl_skipmlp")
A(f"s_cmp_lg_u32 s{sLAYER}, 0")
A("s_cbranch_scc1 L_ctrl_done")
stamp(9)
load_bfrags(vWQA, 1024, 128)
gather_x(WS_XG2)
dump(list(range(X, X+8)), 14, 15)
stamp(10)
stamp_flush(11, 0, T+8, T+9)
A(f"s_mov_b32 s{sLAYER}, 1")
A(f"s_mov_b32 s{sTAG}, 2")
A("s_branch L_ctrl_layer")

LBL("L_ctrl_final")
A(f"s_cmp_lg_u32 s{sG}, 0")
A("s_cbranch_scc1 L_ctrl_done")
A(f"v_cvt_pk_bf16_f32 {vr(T)}, {vr(XO)}, {vr(XO+1)}")
A(f"v_cvt_pk_bf16_f32 {vr(T+1)}, {vr(XO+2)}, {vr(XO+3)}")
A(f"s_mov_b64 exec, {sp(sM4)}")
A(f"global_store_dwordx2 v14, {vr(T,2)}, {sp(S_OUT)}")
A("s_mov_b64 exec, -1")
LBL("L_ctrl_done")
stamp(9, True)
stamp_flush(11, 16, T+8, T+9)
if STAMP == 5:
    A("s_waitcnt lgkmcnt(0)")
    A("s_cmp_lg_u32 s2, 0")
    A("s_cbranch_scc1 L_end")
    A(f"v_mov_b32 {vr(T+8)}, 0")
    A("s_mov_b64 exec, 1")
    for dw, idx in zip((2, 3, 6, 7, 10, 11, 14, 15), (1, 2, 3, 4, 6, 8, 10, 9)):
        A(f"s_sub_u32 s{sT2}, s{sST+2*idx}, s{sST}")
        A(f"v_mov_b32 {vr(T+9)}, s{sT2}")
        A(f"global_store_dword {vr(T+8)}, {vr(T+9)}, {sp(S_DBG)} offset:{4*dw}")
        nop(1)
LBL("L_abort")
LBL("L_end")
A("s_endpgm")

lines.append('.section .rodata,"a"')
lines.append(".p2align 6")
lines.append(f".amdhsa_kernel {NAME}_kernel")
lines.append("  .amdhsa_next_free_vgpr 256")
lines.append("  .amdhsa_next_free_sgpr 102")
lines.append("  .amdhsa_accum_offset 256")
lines.append("  .amdhsa_group_segment_fixed_size 0")
lines.append("  .amdhsa_kernarg_size 104")
lines.append("  .amdhsa_user_sgpr_count 2")
lines.append("  .amdhsa_user_sgpr_kernarg_segment_ptr 1")
lines.append("  .amdhsa_system_sgpr_workgroup_id_x 1")
lines.append(".end_amdhsa_kernel")
open(OUT, "w").write("\n".join(lines) + "\n")
print("wrote", OUT, len(lines), "lines")
```

```python
import sys
import os

NAME = "interleave_layers__sliding_block_cached__mixer_channel_mlp__decode"
DEBUG = int(sys.argv[1]) if len(sys.argv) > 1 else 0
STAMP = int(sys.argv[2]) if len(sys.argv) > 2 else 0
OUT = sys.argv[3] if len(sys.argv) > 3 else f"cdna_kernels/{NAME}.s"
KVPOL = os.environ.get("KVPOL", "nt")
W2POL = os.environ.get("W2POL", "nt")
WPOL = os.environ.get("WPOL", "")
WIN = int(os.environ.get("WIN", "6"))
TOUCH = int(os.environ.get("TOUCH", "1"))
EXP = int(os.environ.get("EXP", "0"))
PRE = int(os.environ.get("PRE", "0"))

WS_Q = 0x000000
WS_XG1 = 0x010000
WS_XG2 = 0x020000
WS_XS1 = 0x030000
WS_XS2 = 0x040000
WS_HF = 0x050000
WS_HS = 0x051000
WS_HZ = 0x052000
WS_XR = 0x053000
WS_Q1 = 0x060000
WS_RS1 = 0x200000
WS_RS2 = 0x300000
WS_DBG = 0x400000
WS_STAMP = 0x800000
WS_H2 = 0x100000

L_WQ = 131072
L_W1 = L_WQ + 14336
L_XN = L_W1 + 7168
L_Q = L_XN + 1024
L_P = L_Q + 1024
L_M = L_P + 512
L_L = L_M + 32
L_MODE = L_L + 32
L_NONCE = L_MODE + 8
L_REL = L_NONCE + 8
LDS_BYTES = 155648

SPIN = 400000
TMO = 300
LOG2E = 0x3fb8aa3b
LOG2E16 = 0x3db8aa3b

lines = []
lab_id = [0]


def A(s):
    lines.append("    " + s)


def LBL(s):
    lines.append(s + ":")


def newlab(p):
    lab_id[0] += 1
    return f"L_{p}_{lab_id[0]}"


def vr(a, n=1):
    return f"v{a}" if n == 1 else f"v[{a}:{a+n-1}]"


def nop(n):
    while n > 0:
        k = min(n, 16)
        A(f"s_nop {k-1}")
        n -= k


S_X, S_K, S_V, S_WQ, S_WO, S_W1, S_B1, S_W2, S_B2, S_OUT, S_DBG, S_WS = 4, 6, 8, 10, 12, 16, 18, 20, 22, 24, 26, 28
sC3 = 3
sG, sJ, sW, sTAG, sMODE, sSPIN = 30, 31, 32, 33, 34, 35
sSB = 36
sT0 = 38
sT2 = 40
sT3 = 41
sVB = 42
sLB = 44
sJC = 45
sNL = 46
sNH = 47
sPK = 48
sM56 = 56
sM4 = 58
sM32 = 60
sM2 = 66
sM8 = 68
sM16 = 70
sC0 = 72
sC1 = 73
sC2 = 74
sREL = 75
sLAYER = 76
sRL = 77
sXCC = 79
sST = 80
sMH1 = 62
sMT1 = 64
sC4 = 37


def sp(a):
    return f"s[{a}:{a+1}]"


def st_local(items):
    lf = newlab("f")
    le = newlab("e")
    A(f"s_cmp_eq_u32 s{sMODE}, 1")
    A(f"s_cbranch_scc1 {lf}")
    for r in items:
        A(r[1:] if r.startswith("!") else f"{r} sc1")
    A(f"s_branch {le}")
    LBL(lf)
    for r in items:
        A(r[1:] if r.startswith("!") else r)
    LBL(le)


def spin_check(abort="L_abort"):
    A(f"s_add_u32 s{sSPIN}, s{sSPIN}, 1")
    A(f"s_cmp_gt_u32 s{sSPIN}, {SPIN}")
    A(f"s_cbranch_scc1 {abort}")


def poll(loads, regs, tmp):
    l = newlab("poll")
    A(f"s_mov_b32 s{sSPIN}, 0")
    LBL(l)
    for x in loads:
        A(x[1:] if x.startswith("!") else f"{x} sc1")
    spin_check()
    A("s_waitcnt vmcnt(0)")
    A(f"v_and_b32 {vr(tmp)}, s{sTAG}, {vr(regs[0])}")
    for r in regs[1:]:
        A(f"v_and_b32 {vr(tmp)}, {vr(tmp)}, {vr(r)}")
    A(f"v_cmp_ne_u32 vcc, 0, {vr(tmp)}")
    A("s_nop 1")
    A("s_cmp_eq_u64 vcc, exec")
    A(f"s_cbranch_scc0 {l}")


def dpp(op, d, s, ror):
    A(f"{op}_dpp {vr(d)}, {vr(s)}, {vr(d)} row_ror:{ror} row_mask:0xf bank_mask:0xf")


def allreduce(op, regs, tmps, rors, swap16=True, swap32=True):
    n = len(regs)
    if rors:
        nop(2)
    for ro in rors:
        for r in regs:
            dpp(op, r, r, ro)
        if n < 3:
            nop(3 - n)
    for which, en in (("16", swap16), ("32", swap32)):
        if not en:
            continue
        for r, t in zip(regs, tmps):
            A(f"v_mov_b32 {vr(t)}, {vr(r)}")
        nop(2)
        for r, t in zip(regs, tmps):
            A(f"v_permlane{which}_swap_b32 {vr(r)}, {vr(t)}")
        nop(1)
        for r, t in zip(regs, tmps):
            A(f"{op} {vr(r)}, {vr(r)}, {vr(t)}")


def dump(regs, slot, atmp):
    if not DEBUG:
        return
    A(f"s_lshl_b32 s{sT2}, s2, 14")
    A(f"s_add_u32 s{sT2}, s{sT2}, {WS_DBG + slot*256}")
    A(f"v_lshlrev_b32 {vr(atmp)}, 2, v0")
    A(f"v_add_u32 {vr(atmp)}, s{sT2}, {vr(atmp)}")
    for i, r in enumerate(regs):
        A(f"global_store_dword {vr(atmp)}, {vr(r)}, {sp(S_WS)} offset:{i*256}")


def stamp(idx):
    if not STAMP:
        return
    A(f"s_memrealtime s[{sST+2*idx}:{sST+2*idx+1}]")


def stamp_flush(n, base_slot, vt, vt2):
    if not STAMP:
        return
    A("s_waitcnt lgkmcnt(0)")
    A(f"s_lshl_b32 s{sT2}, s2, 3")
    A(f"s_add_u32 s{sT2}, s{sT2}, s{sW}")
    A(f"s_lshl_b32 s{sT2}, s{sT2}, 8")
    A(f"s_add_u32 s{sT2}, s{sT2}, {WS_STAMP + base_slot*4}")
    A(f"v_mov_b32 {vr(vt)}, s{sT2}")
    for i in range(n):
        A(f"v_mov_b32 {vr(vt2)}, s{sST+2*i}")
        A(f"global_store_dword {vr(vt)}, {vr(vt2)}, {sp(S_WS)} offset:{4*i}")
        nop(1)


hdr = open(f"cdna_kernels/{NAME}.s.ref").read().split("\n")
for h in hdr:
    if h.startswith("; @launch"):
        lines.append(f"; @launch grid=(256,1,1) block=(320,1,1) lds={LDS_BYTES}")
        break
    lines.append(h)
lines.append('.amdgcn_target "amdgcn-amd-amdhsa--gfx950"')
lines.append(".text")
lines.append(f".globl {NAME}_kernel")
lines.append(".p2align 8")
lines.append(f".type {NAME}_kernel,@function")
LBL(f"{NAME}_kernel")

A("s_cmp_ge_u32 s2, 256")
A("s_cbranch_scc1 L_end")
stamp(0)
A("s_load_dwordx16 s[4:19], s[0:1], 0")
A("s_load_dwordx8 s[20:27], s[0:1], 64")
A("s_load_dwordx2 s[28:29], s[0:1], 96")
A(f"s_and_b32 s{sG}, s2, 7")
A(f"s_lshr_b32 s{sJ}, s2, 3")
A(f"s_min_u32 s{sJC}, s{sJ}, 27")
A("v_lshrrev_b32 v1, 6, v0")
A("v_and_b32 v0, 63, v0")
A("s_nop 1")
A(f"v_readfirstlane_b32 s{sW}, v1")
A(f"s_mov_b32 s{sTAG}, 1")
A(f"s_mov_b32 s{sMODE}, 0")
A(f"s_mov_b32 s{sLAYER}, 0")
for r, (lo, hi) in {sM56: (-1, 0x00ffffff), sM4: (15, 0), sM32: (-1, 0), sM2: (0x00030003, 0x00030003),
                    sM8: (0xff, 0), sM16: (0xffff, 0), sMH1: (0xffff0000, 0xffff0000), sMT1: (0, -1)}.items():
    A(f"s_mov_b32 s{r}, {lo}")
    A(f"s_mov_b32 s{r+1}, {hi}")
A(f"s_mov_b32 s{sC0}, {LOG2E:#x}")
A(f"s_mov_b32 s{sC4}, {LOG2E16:#x}")
A("s_waitcnt lgkmcnt(0)")
A(f"s_cmp_eq_u32 s{sW}, 4")
A("s_cbranch_scc1 L_ctrl")

KF, VF, QF, SA, PF, OA = 16, 80, 144, 176, 184, 200
vKA = 216
vVA = 224
vQA, vPA, vPW, vMW, vMR, vMR2, vOS, vML = 228, 229, 230, 231, 232, 233, 234, 235
vt = 236

A(f"s_lshl_b32 s{sT2}, s{sG}, 25")
A(f"s_add_u32 s{sT2}, s{sT2}, 31457280")
A(f"s_lshl_b32 s{sT3}, s{sJ}, 16")
A(f"s_add_u32 s{sT2}, s{sT2}, s{sT3}")
A(f"s_lshl_b32 s{sT3}, s{sW}, 14")
A(f"s_add_u32 s{sT3}, s{sT2}, s{sT3}")
A(f"s_add_u32 s{sT0}, s{S_K}, s{sT3}")
A(f"s_addc_u32 s{sT0+1}, s{S_K+1}, 0")
A(f"s_lshl_b32 s{sT3}, s{sW}, 7")
A(f"s_add_u32 s{sT3}, s{sT2}, s{sT3}")
A(f"s_add_u32 s{sVB}, s{S_V}, s{sT3}")
A(f"s_addc_u32 s{sVB+1}, s{S_V+1}, 0")
A(f"s_lshl_b32 s{sLB}, s{sW}, 15")
A(f"s_lshl_b32 s{sT2}, s{sG}, 4")
A(f"v_mov_b32 v10, s{sT2}")
A("v_mov_b32 v8, 0")
A("v_mov_b32 v9, 0")
A(f"s_or_b32 s{sT2}, s{sJ}, s{sW}")
A(f"s_cmp_lg_u32 s{sT2}, 0")
A("s_cbranch_scc1 L_att_nolead")
A(f"s_memrealtime s[{sPK}:{sPK+1}]")
A("s_waitcnt lgkmcnt(0)")
A(f"s_and_b32 s{sPK+2}, s{sPK}, 0xfffffff0")
A(f"s_or_b32 s{sPK+3}, s{sPK+1}, 0x80000000")
A(f"v_mov_b32 v8, s{sPK+2}")
A(f"v_mov_b32 v9, s{sPK+3}")
A("s_mov_b64 exec, 1")
A(f"global_store_dwordx2 v10, v[8:9], {sp(S_DBG)}")
A("s_mov_b64 exec, -1")
LBL("L_att_nolead")
A("v_lshrrev_b32 v1, 5, v0")
A("v_and_b32 v2, 31, v0")
A("v_xor_b32 v2, v2, v1")
A("v_lshlrev_b32 v2, 4, v2")
A("v_lshlrev_b32 v1, 9, v1")
A("v_or_b32 v2, v2, v1")
A("v_lshrrev_b32 v1, 3, v0")
A("v_and_b32 v4, 7, v0")
A("v_lshrrev_b32 v5, 1, v4")
A("v_lshrrev_b32 v6, 1, v1")
A("v_and_b32 v6, 1, v6")
A("v_xor_b32 v5, v5, v6")
A("v_lshlrev_b32 v5, 5, v5")
A("v_and_b32 v4, 1, v4")
A("v_lshlrev_b32 v4, 4, v4")
A("v_or_b32 v5, v5, v4")
A("v_lshlrev_b32 v1, 9, v1")
A("v_or_b32 v5, v5, v1")
A("v_xor_b32 v6, 64, v5")
A(f"v_mov_b32 v11, {L_REL}")
A(f"s_mov_b32 s{sREL}, 0")
if TOUCH:
    A("v_mov_b32 v13, 0")
    A(f"v_mov_b32 v14, {WS_RS1}")
    for w, lst in enumerate((((S_WS, "v13"), (S_DBG, "v13")), ((S_WS, "v14"), (S_OUT, "v13")), ((S_WO, "v13"), (S_W2, "v13")), ((S_W1, "v13"), (S_V, "v13")))):
        l = newlab("tch")
        A(f"s_cmp_lg_u32 s{sW}, {w}")
        A(f"s_cbranch_scc1 {l}")
        for (sb, va) in lst:
            A(f"global_load_dword v15, {va}, {sp(sb)}")
        LBL(l)
if PRE == 0:
    A("s_barrier")
    stamp(4)


def throttle():
    l = newlab("go")
    A(f"s_cmp_lg_u32 s{sREL}, 0")
    A(f"s_cbranch_scc1 {l}")
    A("ds_read_b32 v12, v11")
    A("s_waitcnt lgkmcnt(0)")
    A(f"v_readfirstlane_b32 s{sREL}, v12")
    A(f"s_waitcnt vmcnt({WIN-1})")
    LBL(l)


for i in range(16):
    blk = i >> 2
    if (i & 3) == 0:
        A(f"s_add_u32 m0, s{sLB}, {4096*blk}")
    c = ((2 * i) & 14) * 16
    A(f"v_xor_b32 v3, {c}, v2")
    A(f"v_add_u32 v3, {4096*blk}, v3")
    if i >= WIN:
        throttle()
    A(f"global_load_lds_dwordx4 v3, {sp(sT0)} offset:{1024*(i&3)} {KVPOL}")
    if PRE and i == PRE - 1:
        A("s_barrier")
        stamp(4)
for i in range(16):
    A(f"s_add_u32 m0, s{sLB}, {16384 + 1024*i}")
    A(f"v_add_u32 v3, {4096*i}, v{5 + (i & 1)}")
    if 16 + i >= WIN:
        throttle()
    A(f"global_load_lds_dwordx4 v3, {sp(sVB)} {KVPOL}")
A("v_and_b32 v1, 15, v0")
A("v_lshrrev_b32 v2, 4, v0")
A("v_xor_b32 v3, v2, v1")
A("v_lshlrev_b32 v3, 4, v3")
A("v_lshlrev_b32 v4, 9, v1")
A("v_or_b32 v3, v3, v4")
A(f"v_add_u32 v3, s{sLB}, v3")
A(f"v_mov_b32 {vr(vKA)}, v3")
A("v_lshrrev_b32 v3, 2, v1")
A("v_and_b32 v4, 3, v0")
A("v_lshrrev_b32 v5, 1, v3")
A("v_and_b32 v5, 1, v5")
A("v_and_b32 v6, 1, v2")
A("v_lshlrev_b32 v6, 1, v6")
A("v_or_b32 v5, v5, v6")
A("v_lshlrev_b32 v6, 3, v2")
A("v_add_u32 v6, v6, v3")
A("v_lshlrev_b32 v6, 7, v6")
A("v_lshlrev_b32 v4, 3, v4")
A("v_add_u32 v6, v6, v4")
A(f"v_add_u32 v6, s{sLB}, v6")
A("v_add_u32 v6, 16384, v6")
for t in range(4):
    A(f"v_xor_b32 v7, {t}, v5")
    A("v_lshlrev_b32 v7, 5, v7")
    A(f"v_add_u32 {vr(vVA+t)}, v6, v7")
A("v_and_b32 v3, 1, v0")
A("v_lshlrev_b32 v4, 4, v2")
A("v_lshlrev_b32 v5, 9, v3")
A("v_add_u32 v5, v5, v4")
A(f"v_add_u32 {vr(vQA)}, {L_Q}, v5")
A("v_lshlrev_b32 v5, 8, v3")
A("v_add_u32 v5, v5, v4")
A(f"v_add_u32 {vr(vPA)}, {L_P}, v5")
A("v_lshlrev_b32 v5, 2, v3")
A(f"v_add_u32 {vr(vMR2)}, {L_M}, v5")
A("v_and_b32 v4, 1, v2")
A("v_lshlrev_b32 v5, 8, v4")
A("v_lshrrev_b32 v6, 1, v2")
A("v_lshlrev_b32 v6, 4, v6")
A("v_add_u32 v6, v6, v1")
A(f"s_lshl_b32 s{sT2}, s{sW}, 5")
A(f"v_add_u32 v6, s{sT2}, v6")
A("v_lshlrev_b32 v6, 1, v6")
A("v_add_u32 v5, v5, v6")
A(f"v_add_u32 {vr(vPW)}, {L_P}, v5")
A("v_lshlrev_b32 v5, 2, v4")
A(f"v_add_u32 {vr(vMR)}, {L_M}, v5")
A(f"s_lshl_b32 s{sT2}, s{sW}, 3")
A(f"v_add_u32 {vr(vMW)}, s{sT2}, {vr(vMR)}")
A(f"s_lshl_b32 s{sT2}, s{sG}, 5")
A(f"s_lshl_b32 s{sT3}, s{sW}, 2")
A(f"s_add_u32 s{sT2}, s{sT2}, s{sT3}")
A(f"s_lshl_b32 s{sT2}, s{sT2}, 12")
A(f"s_lshl_b32 s{sT3}, s{sJ}, 6")
A(f"s_add_u32 s{sT2}, s{sT2}, s{sT3}")
A(f"s_add_u32 s{sT2}, s{sT2}, {WS_H2}")
A("v_lshlrev_b32 v5, 16, v3")
A("v_lshlrev_b32 v6, 4, v2")
A("v_add_u32 v5, v5, v6")
A(f"v_add_u32 {vr(vOS)}, s{sT2}, v5")
A(f"s_lshl_b32 s{sT2}, s{sG}, 5")
A(f"s_lshl_b32 s{sT3}, s{sW}, 2")
A(f"s_add_u32 s{sT2}, s{sT2}, s{sT3}")
A(f"s_lshl_b32 s{sT2}, s{sT2}, 12")
A(f"s_lshl_b32 s{sT3}, s{sJ}, 3")
A(f"s_add_u32 s{sT2}, s{sT2}, s{sT3}")
A(f"s_add_u32 s{sT2}, s{sT2}, {WS_H2 + 2048}")
A("v_lshlrev_b32 v5, 16, v3")
A("v_lshrrev_b32 v6, 1, v0")
A("v_and_b32 v6, 3, v6")
A("v_lshlrev_b32 v6, 12, v6")
A("v_add_u32 v5, v5, v6")
A(f"v_add_u32 {vr(vML)}, s{sT2}, v5")

A("s_waitcnt vmcnt(16)")
for kk in range(8):
    A(f"v_xor_b32 v3, {64*kk}, {vr(vKA)}")
    for t in range(2):
        A(f"ds_read_b128 {vr(KF+(t*8+kk)*4,4)}, v3 offset:{t*8192}")
stamp(1)
A("s_waitcnt lgkmcnt(0)")
A("v_lshlrev_b32 v1, 4, v0")
A(f"s_lshl_b32 s{sT2}, s{sG}, 5")
A(f"s_add_u32 s{sT2}, s{sT2}, s{sJ}")
A(f"s_mul_i32 s{sT2}, s{sT2}, 14336")
A(f"s_mul_i32 s{sT3}, s{sW}, 896")
A(f"s_add_u32 s{sT2}, s{sT2}, s{sT3}")
A(f"v_add_u32 v2, s{sT2}, v1")
A(f"s_mul_i32 s{sT2}, s{sG}, 28")
A(f"s_add_u32 s{sT2}, s{sT2}, s{sJC}")
A(f"s_mul_i32 s{sC1}, s{sT2}, 7168")
A(f"s_add_u32 s{sC1}, s{sC1}, s{sT3}")
A(f"v_add_u32 v4, s{sC1}, v1")
A(f"s_mov_b64 exec, {sp(sM56)}")
for i in range(4):
    A(f"s_add_u32 m0, s{sLB}, {1024*i}")
    A(f"v_add_u32 v3, {3584*i}, v2")
    A(f"global_load_lds_dwordx4 v3, {sp(S_WO)} {W2POL}")
for i in range(2):
    A(f"s_add_u32 m0, s{sLB}, {1024*(4+i)}")
    A(f"v_add_u32 v3, {3584*i}, v4")
    A(f"global_load_lds_dwordx4 v3, {sp(S_W2)} {W2POL}")
A("s_mov_b64 exec, -1")
A(f"s_lshl_b32 s{sT3}, s{sT2}, 4")
A(f"s_mov_b32 s{sC1}, 3584")
A(f"v_mul_lo_u32 v2, s{sC1}, v0")
A(f"s_mul_i32 s{sC1}, s{sW}, 229376")
A(f"s_add_u32 s{sT3}, s{sT3}, s{sC1}")
A(f"v_add_u32 v2, s{sT3}, v2")
A(f"s_lshl_b32 s{sT2}, s{sW}, 10")
A(f"s_add_u32 m0, s{sT2}, {L_W1}")
A("s_nop 0")
A(f"global_load_lds_dwordx4 v2, {sp(S_W1)} {WPOL}")
A(f"s_cmp_eq_u32 s{sW}, 3")
A("s_cbranch_scc1 L_att_now1")
A(f"s_add_u32 m0, s{sT2}, {L_W1 + 4096}")
A(f"v_add_u32 v2, {229376*4}, v2")
A(f"global_load_lds_dwordx4 v2, {sp(S_W1)} {WPOL}")
LBL("L_att_now1")
A(f"s_cmp_lg_u32 s{sW}, 0")
A("s_cbranch_scc1 L_att_nox")
A(f"s_cmp_lg_u32 s{sJ}, 0")
A("s_cbranch_scc1 L_att_nolead2")
A("s_mov_b64 exec, 1")
A(f"global_store_dwordx2 v10, v[8:9], {sp(S_DBG)} offset:128 sc1")
A("s_mov_b64 exec, -1")
LBL("L_att_nolead2")
for i in range(4):
    A(f"v_mov_b32 v{12+i}, 0")
A(f"s_lshl_b32 s{sT2}, s{sJ}, 9")
A(f"s_lshl_b32 s{sT3}, s{sG}, 6")
A(f"s_add_u32 s{sT2}, s{sT2}, s{sT3}")
A(f"s_add_u32 s{sT2}, s{sT2}, {WS_XS1}")
A("v_lshlrev_b32 v11, 4, v0")
A(f"v_add_u32 v11, s{sT2}, v11")
A(f"v_add_u32 v7, {WS_XS2-WS_XS1}, v11")
A(f"s_mov_b64 exec, {sp(sM4)}")
A(f"global_store_dwordx4 v11, v[12:15], {sp(S_WS)} sc1")
A(f"global_store_dwordx4 v7, v[12:15], {sp(S_WS)} sc1")
A("s_mov_b64 exec, -1")
LBL("L_att_nox")
if EXP:
    A("s_waitcnt vmcnt(0)")
    stamp(2)
    stamp(3)
    stamp_flush(5, 0, vt, vt+1)
    A("s_endpgm")

LBL("L_att_layer")
A("s_barrier")
for kk in range(8):
    A(f"ds_read_b128 {vr(QF+4*kk,4)}, {vr(vQA)} offset:{64*kk}")
for kk in range(8):
    if kk % 2 == 0:
        A(f"s_waitcnt lgkmcnt({6-kk})")
    for t in range(2):
        c = "0" if kk == 0 else vr(SA+4*t, 4)
        A(f"v_mfma_f32_16x16x32_bf16 {vr(SA+4*t,4)}, {vr(QF+4*kk,4)}, {vr(KF+(t*8+kk)*4,4)}, {c}")
nop(9)
A(f"v_cndmask_b32 {vr(vt)}, {vr(SA)}, {vr(SA+1)}, {sp(sMH1)}")
A(f"v_cndmask_b32 {vr(vt+1)}, {vr(SA+4)}, {vr(SA+5)}, {sp(sMH1)}")
A(f"v_cndmask_b32 {vr(vt)}, {vr(vt)}, {vr(vt+1)}, {sp(sMT1)}")
A(f"v_cvt_pk_bf16_f32 {vr(vt)}, {vr(vt)}, {vr(vt)}")
A(f"v_lshlrev_b32 {vr(vt)}, 16, {vr(vt)}")
A(f"v_mul_f32 {vr(vt)}, 0x3d800000, {vr(vt)}")
A(f"v_mov_b32 {vr(vt+1)}, {vr(vt)}")
allreduce("v_max_f32", [vt+1], [vt+2], [8, 4, 2, 1], swap16=False, swap32=True)
A(f"ds_write_b32 {vr(vMW)}, {vr(vt+1)}")
A("s_waitcnt lgkmcnt(0)")
A("s_barrier")
A(f"ds_read2_b32 {vr(vt+2,2)}, {vr(vMR)} offset0:0 offset1:2")
A(f"ds_read2_b32 {vr(vt+4,2)}, {vr(vMR)} offset0:4 offset1:6")
A("s_waitcnt lgkmcnt(0)")
A(f"v_max_f32 {vr(vt+2)}, {vr(vt+2)}, {vr(vt+3)}")
A(f"v_max3_f32 {vr(vt+2)}, {vr(vt+2)}, {vr(vt+4)}, {vr(vt+5)}")
A(f"v_sub_f32 {vr(vt)}, {vr(vt)}, {vr(vt+2)}")
A(f"v_mul_f32 {vr(vt)}, s{sC0}, {vr(vt)}")
A(f"v_exp_f32 {vr(vt)}, {vr(vt)}")
nop(1)
A(f"v_cvt_pk_bf16_f32 {vr(vt+1)}, {vr(vt)}, {vr(vt)}")
A(f"ds_write_b16 {vr(vPW)}, {vr(vt+1)}")
allreduce("v_add_f32", [vt], [vt+2], [8, 4, 2, 1], swap16=False, swap32=True)
A(f"ds_write_b32 {vr(vMW)}, {vr(vt)} offset:32")
A(f"s_cmp_lg_u32 s{sLAYER}, 0")
A("s_cbranch_scc1 L_att_skipv")
A(f"s_cmp_eq_u32 s{sW}, 0")
A("s_cbranch_scc1 L_att_vw0")
A(f"s_cmp_eq_u32 s{sW}, 3")
A("s_cbranch_scc1 L_att_vw3")
A("s_waitcnt vmcnt(8)")
A("s_branch L_att_vwd")
LBL("L_att_vw3")
A("s_waitcnt vmcnt(7)")
A("s_branch L_att_vwd")
LBL("L_att_vw0")
A("s_waitcnt vmcnt(10)")
LBL("L_att_vwd")
for t in range(4):
    for ks in range(4):
        for hh in range(2):
            A(f"ds_read_b64_tr_b16 {vr(VF+(t*4+ks)*4+2*hh,2)}, {vr(vVA+t)} offset:{ks*4096+hh*512}")
stamp(2)
LBL("L_att_skipv")
A("s_waitcnt lgkmcnt(0)")
A("s_barrier")
for ks in range(4):
    A(f"ds_read_b128 {vr(PF+4*ks,4)}, {vr(vPA)} offset:{64*ks}")
A(f"ds_read2_b32 {vr(vt+2,2)}, {vr(vMR2)} offset0:0 offset1:2")
A(f"ds_read2_b32 {vr(vt+4,2)}, {vr(vMR2)} offset0:4 offset1:6")
A(f"ds_read2_b32 {vr(vt+6,2)}, {vr(vMR2)} offset0:8 offset1:10")
A(f"ds_read2_b32 {vr(vt+8,2)}, {vr(vMR2)} offset0:12 offset1:14")
A(f"v_mov_b32 {vr(vt)}, {L_MODE}")
A(f"ds_read_b32 {vr(vt+1)}, {vr(vt)}")
for ks in range(4):
    A(f"s_waitcnt lgkmcnt({8-ks})")
    for t in range(4):
        c = "0" if ks == 0 else vr(OA+4*t, 4)
        A(f"v_mfma_f32_16x16x32_bf16 {vr(OA+4*t,4)}, {vr(VF+(t*4+ks)*4,4)}, {vr(PF+4*ks,4)}, {c}")
A("s_waitcnt lgkmcnt(0)")
A(f"v_readfirstlane_b32 s{sMODE}, {vr(vt+1)}")
A(f"v_max_f32 {vr(vt+2)}, {vr(vt+2)}, {vr(vt+3)}")
A(f"v_max3_f32 {vr(vt+2)}, {vr(vt+2)}, {vr(vt+4)}, {vr(vt+5)}")
A(f"v_add_f32 {vr(vt+3)}, {vr(vt+6)}, {vr(vt+7)}")
A(f"v_add_f32 {vr(vt+4)}, {vr(vt+8)}, {vr(vt+9)}")
A(f"v_add_f32 {vr(vt+3)}, {vr(vt+3)}, {vr(vt+4)}")
A(f"v_bfi_b32 {vr(vt+2)}, 3, s{sTAG}, {vr(vt+2)}")
for t in range(1, 4):
    A(f"v_add_u32 {vr(vt+3+t)}, {4096*t}, {vr(vOS)}")
A(f"s_mov_b64 exec, {sp(sM8)}")
st_local([f"global_store_dwordx2 {vr(vML)}, {vr(vt+2,2)}, {sp(S_WS)}"])
for t in range(4):
    A(f"v_bfi_b32 {vr(OA+4*t)}, 3, s{sTAG}, {vr(OA+4*t)}") if False else None
A(f"s_mov_b64 exec, {sp(sM2)}")
for t in range(4):
    A(f"v_bfi_b32 {vr(OA+4*t)}, 3, s{sTAG}, {vr(OA+4*t)}")
st_local([
    f"global_store_dwordx4 {vr(vOS)}, {vr(OA,4)}, {sp(S_WS)}",
    f"global_store_dwordx4 {vr(vt+4)}, {vr(OA+4,4)}, {sp(S_WS)}",
    f"global_store_dwordx4 {vr(vt+5)}, {vr(OA+8,4)}, {sp(S_WS)}",
    f"global_store_dwordx4 {vr(vt+6)}, {vr(OA+12,4)}, {sp(S_WS)}"])
A("s_mov_b64 exec, -1")
A(f"s_cmp_lg_u32 s{sLAYER}, 0")
A("s_cbranch_scc1 L_att_noxr")
A("s_waitcnt vmcnt(0)")
A("s_barrier")
A(f"s_cmp_lg_u32 s{sW}, 0")
A("s_cbranch_scc1 L_att_noxr")
A(f"v_mov_b32 {vr(vt+2)}, {L_NONCE}")
A(f"ds_read_b64 {vr(vt+4,2)}, {vr(vt+2)}")
A(f"s_lshl_b32 s{sT2}, s{sJ}, 6")
A(f"s_lshl_b32 s{sT3}, s{sG}, 3")
A(f"s_add_u32 s{sT2}, s{sT2}, s{sT3}")
A(f"s_add_u32 s{sT2}, s{sT2}, {WS_XR}")
A(f"v_mov_b32 {vr(vt+2)}, s{sT2}")
A("s_waitcnt lgkmcnt(0)")
A("s_mov_b64 exec, 1")
A(f"global_store_dwordx2 {vr(vt+2)}, {vr(vt+4,2)}, {sp(S_WS)} sc1")
A("s_mov_b64 exec, -1")
LBL("L_att_noxr")
A(f"s_add_u32 s{sLAYER}, s{sLAYER}, 1")
A(f"s_lshl_b32 s{sTAG}, s{sTAG}, 1")
A(f"s_cmp_lt_u32 s{sLAYER}, 2")
A("s_cbranch_scc1 L_att_layer")
stamp(3)
stamp_flush(5, 0, vt, vt+1)
A("s_endpgm")

BF, AF, WO, W2, X = 16, 72, 128, 192, 224
XO, B2O, B1 = 232, 236, 255
T = 240
vZ = 80
LBL("L_ctrl")
for i in range(4):
    A(f"v_mov_b32 v{vZ+i}, 0")
for i in range(8):
    A(f"v_mov_b32 {vr(X+i)}, 0")
    A(f"v_mov_b32 {vr(AF+i)}, 0")
A("v_lshlrev_b32 v5, 4, v0")
A(f"s_mov_b64 exec, {sp(sM56)}")
A(f"global_load_dwordx4 {vr(AF,4)}, v5, {sp(S_X)}")
A("s_mov_b64 exec, -1")
A("v_and_b32 v14, 3, v0")
A("v_lshlrev_b32 v14, 3, v14")
A(f"s_lshl_b32 s{sT2}, s{sJC}, 5")
A(f"v_add_u32 v14, s{sT2}, v14")
A(f"global_load_dwordx2 {vr(T,2)}, v14, {sp(S_X)}")
A(f"global_load_dwordx2 {vr(B2O,2)}, v14, {sp(S_B2)}")
A(f"s_mul_i32 s{sT2}, s{sG}, 28")
A(f"s_add_u32 s{sT2}, s{sT2}, s{sJC}")
A(f"s_lshl_b32 s{sT3}, s{sT2}, 4")
A(f"v_and_b32 {vr(T+3)}, 7, v0")
A(f"v_lshlrev_b32 {vr(T+3)}, 1, {vr(T+3)}")
A(f"v_add_u32 {vr(T+3)}, s{sT3}, {vr(T+3)}")
A(f"global_load_ushort {vr(B1)}, {vr(T+3)}, {sp(S_B1)}")
A("v_lshrrev_b32 v15, 1, v0")
A("v_lshlrev_b32 v15, 13, v15")
A(f"v_and_b32 {vr(T+2)}, 1, v0")
A(f"v_lshlrev_b32 {vr(T+2)}, 4, {vr(T+2)}")
A(f"v_add_u32 v15, v15, {vr(T+2)}")
A(f"s_lshl_b32 s{sT2}, s{sG}, 10")
A(f"s_lshl_b32 s{sT3}, s{sJ}, 5")
A(f"s_add_u32 s{sT2}, s{sT2}, s{sT3}")
A(f"v_add_u32 v15, s{sT2}, v15")
for i in range(14):
    A(f"s_mov_b32 m0, {L_WQ + 1024*i}")
    A(f"v_add_u32 {vr(T+2)}, {262144*i}, v15")
    A(f"global_load_lds_dwordx4 {vr(T+2)}, {sp(S_WQ)} {WPOL}")
A(f"s_lshl_b32 s{sT2}, s{sG}, 5")
A(f"s_add_u32 s{sT2}, s{sT2}, s{sJ}")
A(f"s_lshl_b32 s{sT3}, s{sT2}, 12")
A(f"s_add_u32 s{sT3}, s{sT3}, {WS_H2}")
A(f"v_add_u32 v6, s{sT3}, v5")
A(f"s_lshl_b32 s{sT3}, s{sT2}, 11")
A(f"s_add_u32 s{sT3}, s{sT3}, {WS_RS1}")
A(f"v_add_u32 v7, s{sT3}, v5")
A(f"v_add_u32 v8, {WS_RS2-WS_RS1}, v7")
A(f"s_lshl_b32 s{sT2}, s{sG}, 11")
A(f"s_lshl_b32 s{sT3}, s{sJ}, 6")
A(f"s_add_u32 s{sT2}, s{sT2}, s{sT3}")
A(f"v_add_u32 v9, s{sT2}, v5")
A(f"v_add_u32 v10, {WS_XG1}, v9")
A(f"v_add_u32 v11, {WS_XG2}, v9")
A(f"s_lshl_b32 s{sT2}, s{sJ}, 9")
A(f"s_lshl_b32 s{sT3}, s{sG}, 6")
A(f"s_add_u32 s{sT2}, s{sT2}, s{sT3}")
A(f"s_add_u32 s{sT2}, s{sT2}, {WS_XS1}")
A(f"v_add_u32 v12, s{sT2}, v5")
A(f"v_add_u32 v13, {WS_XS2-WS_XS1}, v12")


def local_clears(pol, z):
    for i in range(2):
        A(f"global_store_dwordx4 v6, {vr(z,4)}, {sp(S_WS)} offset:{1024*i} {pol}")
    A(f"s_mov_b64 exec, {sp(sM16)}")
    A(f"global_store_dwordx4 v6, {vr(z,4)}, {sp(S_WS)} offset:2048 {pol}")
    A("s_mov_b64 exec, -1")
    for r in (7, 8):
        for i in range(2):
            A(f"global_store_dwordx4 v{r}, {vr(z,4)}, {sp(S_WS)} offset:{1024*i} {pol}")
    A(f"s_mov_b64 exec, {sp(sM4)}")
    for r in (9, 10, 11):
        A(f"global_store_dwordx4 v{r}, {vr(z,4)}, {sp(S_WS)} {pol}")
    A("s_mov_b64 exec, -1")


local_clears("", vZ)
A(f"v_mov_b32 {vr(T+4)}, {L_REL}")
A(f"ds_write_b32 {vr(T+4)}, v{vZ}")
A("s_waitcnt lgkmcnt(0)")
A(f"s_getreg_b32 s{sXCC}, hwreg(HW_REG_XCC_ID)")
A(f"s_and_b32 s{sXCC}, s{sXCC}, 15")
A(f"s_lshl_b32 s{sT2}, s{sG}, 4")
A(f"v_mov_b32 v15, s{sT2}")
A(f"s_mov_b32 s{sSPIN}, 0")
A(f"v_mov_b32 {vr(T+4)}, 0")
A(f"v_mov_b32 {vr(T+5)}, 0")
A(f"global_load_dwordx2 {vr(T+2,2)}, v15, {sp(S_DBG)} sc1")
A("s_barrier")
if EXP:
    A(f"v_mov_b32 {vr(T+4)}, {L_REL}")
    A(f"v_mov_b32 {vr(T+5)}, 1")
    A(f"ds_write_b32 {vr(T+4)}, {vr(T+5)}")
    A("s_waitcnt vmcnt(0)")
    stamp(1)
    stamp_flush(11, 0, T+8, T+9)
    A("s_endpgm")
A(f"v_mov_b32 {vr(T+6)}, v15")
A("v_lshrrev_b32 v3, 4, v0")
A("v_and_b32 v4, 15, v0")
A("v_lshrrev_b32 v4, 2, v4")
A("v_lshlrev_b32 v15, 3, v3")
A("v_add_u32 v15, v15, v4")
vWQA, vW1A, vXNW, vXNR = T+10, T+11, T+12, T+13
A(f"v_lshlrev_b32 {vr(vWQA)}, 5, v15")
A("v_and_b32 v4, 3, v0")
A("v_lshlrev_b32 v4, 3, v4")
A(f"v_add_u32 {vr(vWQA)}, {vr(vWQA)}, v4")
A(f"v_add_u32 {vr(vWQA)}, {L_WQ}, {vr(vWQA)}")
A(f"v_lshlrev_b32 {vr(vW1A)}, 4, v15")
A("v_and_b32 v4, 1, v0")
A("v_lshlrev_b32 v4, 3, v4")
A(f"v_add_u32 {vr(vW1A)}, {vr(vW1A)}, v4")
A(f"v_add_u32 {vr(vW1A)}, {L_W1}, {vr(vW1A)}")
A(f"v_add_u32 {vr(vXNW)}, {L_XN}, v5")
A(f"v_lshlrev_b32 {vr(vXNR)}, 4, v3")
A(f"v_add_u32 {vr(vXNR)}, {L_XN}, {vr(vXNR)}")
A(f"v_mov_b32 v15, {vr(T+6)}")
A("s_branch L_nonce_nos")
LBL("L_nonce")
A(f"global_load_dwordx2 {vr(T+2,2)}, v15, {sp(S_DBG)} sc1")
A(f"s_cmp_lt_u32 s{sSPIN}, {TMO}")
A("s_cbranch_scc1 L_nonce_nos")
A(f"global_load_dwordx2 {vr(T+4,2)}, v15, {sp(S_DBG)} offset:128 sc1")
LBL("L_nonce_nos")
spin_check()
A("s_waitcnt vmcnt(0)")
A(f"v_or_b32 {vr(T+2)}, {vr(T+2)}, {vr(T+4)}")
A(f"v_or_b32 {vr(T+3)}, {vr(T+3)}, {vr(T+5)}")
A("s_nop 0")
A(f"v_readfirstlane_b32 s{sNL}, {vr(T+2)}")
A(f"v_readfirstlane_b32 s{sNH}, {vr(T+3)}")
A("s_nop 1")
A(f"s_cmp_lt_i32 s{sNH}, 0")
A("s_cbranch_scc0 L_nonce")
stamp(1)
A(f"v_mov_b32 {vr(T+4)}, {L_NONCE}")
A(f"ds_write_b64 {vr(T+4)}, {vr(T+2,2)}")


def load_bfrags(addr, kstep, hstep):
    for kk in range(14):
        for hh in range(2):
            A(f"ds_read_b64_tr_b16 {vr(BF+4*kk+2*hh,2)}, {vr(addr)} offset:{kk*kstep+hh*hstep}")


load_bfrags(vWQA, 1024, 128)
for i in range(4):
    A(f"v_lshlrev_b32 {vr(X+2*i)}, 16, {vr(AF+i)}")
    A(f"v_and_b32 {vr(X+2*i+1)}, 0xffff0000, {vr(AF+i)}")
for i in range(2):
    A(f"v_lshlrev_b32 {vr(XO+2*i)}, 16, {vr(T+i)}")
    A(f"v_and_b32 {vr(XO+2*i+1)}, 0xffff0000, {vr(T+i)}")
A(f"v_and_b32 {vr(B2O+3)}, 0xffff0000, {vr(B2O+1)}")
A(f"v_lshlrev_b32 {vr(B2O+2)}, 16, {vr(B2O+1)}")
A(f"v_and_b32 {vr(B2O+1)}, 0xffff0000, {vr(B2O)}")
A(f"v_lshlrev_b32 {vr(B2O)}, 16, {vr(B2O)}")
A(f"v_lshlrev_b32 {vr(B1)}, 16, {vr(B1)}")


def layernorm(xin, xout, pk, t):
    s1, s2, a, b = t, t+1, t+2, t+3
    A(f"v_add_f32 {vr(s1)}, {vr(xin)}, {vr(xin+1)}")
    A(f"v_mul_f32 {vr(s2)}, {vr(xin)}, {vr(xin)}")
    A(f"v_fmac_f32 {vr(s2)}, {vr(xin+1)}, {vr(xin+1)}")
    for i in range(2, 8):
        A(f"v_add_f32 {vr(s1)}, {vr(s1)}, {vr(xin+i)}")
        A(f"v_fmac_f32 {vr(s2)}, {vr(xin+i)}, {vr(xin+i)}")
    allreduce("v_add_f32", [s1, s2], [a, b], [8, 4, 2, 1])
    A(f"v_mul_f32 {vr(s1)}, 0x3b124925, {vr(s1)}")
    A(f"v_mul_f32 {vr(s2)}, 0x3b124925, {vr(s2)}")
    A(f"v_fma_f32 {vr(s2)}, -{vr(s1)}, {vr(s1)}, {vr(s2)}")
    A(f"v_max_f32 {vr(s2)}, 0, {vr(s2)}")
    A(f"v_cvt_pk_bf16_f32 {vr(a)}, {vr(s1)}, {vr(s2)}")
    A(f"v_lshlrev_b32 {vr(s1)}, 16, {vr(a)}")
    A(f"v_and_b32 {vr(s2)}, 0xffff0000, {vr(a)}")
    A(f"v_add_f32 {vr(s2)}, 0x3727c5ac, {vr(s2)}")
    A(f"v_cvt_pk_bf16_f32 {vr(a)}, {vr(s2)}, {vr(s2)}")
    A(f"v_lshlrev_b32 {vr(s2)}, 16, {vr(a)}")
    A(f"v_sqrt_f32 {vr(s2)}, {vr(s2)}")
    nop(1)
    A(f"v_cvt_pk_bf16_f32 {vr(a)}, {vr(s2)}, {vr(s2)}")
    A(f"v_lshlrev_b32 {vr(s2)}, 16, {vr(a)}")
    A(f"v_rcp_f32 {vr(b)}, {vr(s2)}")
    d0, d1, q0, q1 = t+4, t+5, t+6, t+7
    for i in range(4):
        A(f"v_sub_f32 {vr(d0)}, {vr(xin+2*i)}, {vr(s1)}")
        A(f"v_sub_f32 {vr(d1)}, {vr(xin+2*i+1)}, {vr(s1)}")
        A(f"v_cvt_pk_bf16_f32 {vr(a)}, {vr(d0)}, {vr(d1)}")
        A(f"v_lshlrev_b32 {vr(d0)}, 16, {vr(a)}")
        A(f"v_and_b32 {vr(d1)}, 0xffff0000, {vr(a)}")
        A(f"v_mul_f32 {vr(q0)}, {vr(d0)}, {vr(b)}")
        A(f"v_mul_f32 {vr(q1)}, {vr(d1)}, {vr(b)}")
        A(f"v_fma_f32 {vr(d0)}, -{vr(q0)}, {vr(s2)}, {vr(d0)}")
        A(f"v_fma_f32 {vr(d1)}, -{vr(q1)}, {vr(s2)}, {vr(d1)}")
        A(f"v_fmac_f32 {vr(q0)}, {vr(d0)}, {vr(b)}")
        A(f"v_fmac_f32 {vr(q1)}, {vr(d1)}, {vr(b)}")
        A(f"v_cvt_pk_bf16_f32 {vr(pk+i)}, {vr(q0)}, {vr(q1)}")
        if xout is not None:
            A(f"v_lshlrev_b32 {vr(xout+2*i)}, 16, {vr(pk+i)}")
            A(f"v_and_b32 {vr(xout+2*i+1)}, 0xffff0000, {vr(pk+i)}")


def matvec(pk, acc):
    A(f"s_mov_b64 exec, {sp(sM56)}")
    A(f"ds_write_b128 {vr(vXNW)}, {vr(pk,4)}")
    A("s_mov_b64 exec, -1")
    A("s_waitcnt lgkmcnt(0)")
    for kk in range(14):
        A(f"ds_read_b128 {vr(AF+4*kk,4)}, {vr(vXNR)} offset:{64*kk}")
    for kk in range(14):
        if kk % 2 == 0:
            A(f"s_waitcnt lgkmcnt({max(0, 12-kk)})")
        c = "0" if kk == 0 else vr(acc, 4)
        A(f"v_mfma_f32_16x16x32_bf16 {vr(acc,4)}, {vr(AF+4*kk,4)}, {vr(BF+4*kk,4)}, {c}")
    nop(9)


PK = T
ACC = T+4
LNT = AF
H = AF+16
G = AF+24


def own_record(wsbase, pol):
    A(f"s_or_b32 s{sT2}, s{sNL}, s{sXCC}")
    A(f"v_mov_b32 {vr(H+4)}, s{sT2}")
    A(f"v_mov_b32 {vr(H+5)}, s{sNH}")
    A(f"s_lshl_b32 s{sT2}, s{sG}, 8")
    A(f"s_lshl_b32 s{sT3}, s{sJ}, 3")
    A(f"s_add_u32 s{sT2}, s{sT2}, s{sT3}")
    A(f"s_add_u32 s{sT2}, s{sT2}, {wsbase}")
    A(f"v_mov_b32 {vr(H+7)}, s{sT2}")
    A("s_mov_b64 exec, 1")
    A(f"global_store_dwordx2 {vr(H+7)}, {vr(H+4,2)}, {sp(S_WS)} {pol}")
    A("s_mov_b64 exec, -1")


def q1_store(pol):
    A(f"s_mov_b64 exec, {sp(sM16)}")
    A(f"global_store_dwordx2 {vr(G+2)}, {vr(G,2)}, {sp(S_WS)} {pol}")
    A("s_mov_b64 exec, -1")


LBL("L_ctrl_layer")
A("s_waitcnt lgkmcnt(0)")
layernorm(X, None, PK, LNT)
matvec(PK, ACC)
A(f"v_cvt_pk_bf16_f32 {vr(ACC)}, {vr(ACC)}, {vr(ACC)}")
A(f"v_lshlrev_b32 {vr(ACC)}, 16, {vr(ACC)}")
stamp(2)
A(f"s_cmp_lg_u32 s{sLAYER}, 0")
A("s_cbranch_scc1 L_ctrl_pubq")
A(f"s_and_b32 s{sC1}, s{sNH}, 0xffff")
A(f"v_or_b32 {vr(G)}, s{sC1}, {vr(ACC)}")
A(f"v_mov_b32 {vr(G+1)}, s{sNL}")
A(f"s_lshl_b32 s{sT2}, s{sG}, 12")
A(f"s_add_u32 s{sT2}, s{sT2}, {WS_Q1}")
A(f"s_lshl_b32 s{sT3}, s{sJ}, 7")
A(f"s_add_u32 s{sT3}, s{sT3}, s{sT2}")
A(f"v_lshlrev_b32 {vr(G+2)}, 3, v0")
A(f"v_add_u32 {vr(G+2)}, s{sT3}, {vr(G+2)}")
A(f"v_lshlrev_b32 {vr(H+3)}, 6, v0")
A(f"v_add_u32 {vr(H+3)}, s{sT2}, {vr(H+3)}")
q1_store("")
own_record(WS_HF, "")
A(f"s_mov_b32 s{sSPIN}, 0")
LBL("L_q1")
for i in range(4):
    A(f"global_load_dwordx4 {vr(AF+4*i,4)}, {vr(H+3)}, {sp(S_WS)} offset:{16*i} sc1")
spin_check()
A(f"s_cmp_lg_u32 s{sSPIN}, {TMO}")
A("s_cbranch_scc1 L_q1_nos")
q1_store("sc1")
own_record(WS_HS, "sc1")
LBL("L_q1_nos")
A("s_waitcnt vmcnt(0)")
A(f"v_xor_b32 {vr(H+4)}, s{sNL}, {vr(AF+1)}")
for i in range(1, 8):
    A(f"v_xor_b32 {vr(H+5)}, s{sNL}, {vr(AF+2*i+1)}")
    A(f"v_or_b32 {vr(H+4)}, {vr(H+4)}, {vr(H+5)}")
for i in range(8):
    A(f"v_xor_b32 {vr(H+5)}, s{sC1}, {vr(AF+2*i)}")
    A(f"v_and_b32 {vr(H+5)}, 0xffff, {vr(H+5)}")
    A(f"v_or_b32 {vr(H+4)}, {vr(H+4)}, {vr(H+5)}")
A(f"v_cmp_eq_u32 vcc, 0, {vr(H+4)}")
A("s_nop 1")
A("s_cmp_eq_u64 vcc, exec")
A("s_cbranch_scc0 L_q1")
for i in range(1, 8):
    A(f"v_mov_b32 {vr(AF+i)}, {vr(AF+2*i)}")
A(f"v_mov_b32 {vr(H)}, {L_REL}")
A(f"v_mov_b32 {vr(H+1)}, 1")
A(f"ds_write_b32 {vr(H)}, {vr(H+1)}")
A("s_branch L_ctrl_gotq")
LBL("L_ctrl_pubq")
A(f"v_or_b32 {vr(ACC)}, s{sTAG}, {vr(ACC)}")
A(f"v_mul_u32_u24 {vr(T+8)}, 12, v0")
A(f"v_sub_u32 {vr(T+8)}, v9, {vr(T+8)}")
A(f"s_lshl_b32 s{sT2}, s{sG}, 11")
A(f"v_lshlrev_b32 {vr(T+9)}, 5, v0")
A(f"v_add_u32 {vr(T+9)}, s{sT2}, {vr(T+9)}")
A(f"s_mov_b64 exec, {sp(sM16)}")
st_local([f"global_store_dword {vr(T+8)}, {vr(ACC)}, {sp(S_WS)}"])
A("s_mov_b64 exec, -1")
poll([f"global_load_dwordx4 {vr(AF,4)}, {vr(T+9)}, {sp(S_WS)}",
      f"global_load_dwordx4 {vr(AF+4,4)}, {vr(T+9)}, {sp(S_WS)} offset:16"],
     list(range(AF, AF+8)), T+8)
LBL("L_ctrl_gotq")
A(f"s_mov_b32 s{sC3}, 0x07060302")
for i in range(4):
    A(f"v_perm_b32 {vr(AF+8+i)}, {vr(AF+2*i+1)}, {vr(AF+2*i)}, s{sC3}")
A(f"v_add_u32 v15, {L_Q}, v5")
A(f"ds_write_b128 v15, {vr(AF+8,4)}")
A("s_waitcnt lgkmcnt(0)")
stamp(3)
A("s_barrier")
A(f"s_cmp_eq_u32 s{sLAYER}, 0")
A("s_cbranch_scc1 L_ctrl_b1")
load_bfrags(vW1A, 512, 64)
A("s_barrier")
A("s_waitcnt lgkmcnt(0)")
A("s_barrier")
A("s_branch L_ctrl_l2")
LBL("L_ctrl_b1")
A("s_barrier")
A(f"s_lshl_b32 s{sT2}, s{sG}, 8")
A(f"s_add_u32 s{sT2}, s{sT2}, {WS_HF}")
A("v_and_b32 v15, 31, v0")
A("v_lshlrev_b32 v15, 3, v15")
A(f"v_add_u32 v15, s{sT2}, v15")
A(f"v_add_u32 {vr(AF+14)}, {WS_HS-WS_HF}, v15")
A(f"s_mov_b32 s{sSPIN}, 0")
A(f"s_mov_b32 s{sC1}, 0")
A(f"v_mov_b32 {vr(H+2)}, 0")
A(f"v_mov_b32 {vr(H+3)}, 0")
LBL("L_hello")
A(f"global_load_dwordx2 {vr(H,2)}, v15, {sp(S_WS)} sc1")
A(f"s_cmp_eq_u32 s{sC1}, 0")
A("s_cbranch_scc1 L_hello_nos")
A(f"global_load_dwordx2 {vr(H+2,2)}, {vr(AF+14)}, {sp(S_WS)} sc1")
LBL("L_hello_nos")
spin_check()
A("s_waitcnt vmcnt(0)")
A(f"v_and_b32 {vr(H+4)}, -16, {vr(H)}")
A(f"v_xor_b32 {vr(H+4)}, s{sNL}, {vr(H+4)}")
A(f"v_xor_b32 {vr(H+5)}, s{sNH}, {vr(H+1)}")
A(f"v_or_b32 {vr(H+4)}, {vr(H+4)}, {vr(H+5)}")
A(f"v_cmp_eq_u32 {sp(sT0)}, 0, {vr(H+4)}")
A(f"v_and_b32 {vr(H+4)}, -16, {vr(H+2)}")
A(f"v_xor_b32 {vr(H+4)}, s{sNL}, {vr(H+4)}")
A(f"v_xor_b32 {vr(H+5)}, s{sNH}, {vr(H+3)}")
A(f"v_or_b32 {vr(H+4)}, {vr(H+4)}, {vr(H+5)}")
A(f"v_cmp_eq_u32 vcc, 0, {vr(H+4)}")
A("s_nop 1")
A(f"v_cndmask_b32 {vr(H)}, {vr(H+2)}, {vr(H)}, {sp(sT0)}")
A(f"s_or_b64 {sp(sT0)}, {sp(sT0)}, vcc")
A(f"v_and_b32 {vr(H)}, 15, {vr(H)}")
A(f"v_cmp_ne_u32 vcc, s{sXCC}, {vr(H)}")
A("s_nop 1")
A(f"s_and_b64 vcc, vcc, {sp(sT0)}")
A("s_cmp_lg_u64 vcc, 0")
A("s_cbranch_scc1 L_slow")
A(f"s_cmp_eq_u64 {sp(sT0)}, exec")
A("s_cbranch_scc1 L_fast")
A(f"s_cmp_lt_u32 s{sSPIN}, {TMO}")
A("s_cbranch_scc1 L_hello")
A(f"s_cmp_lg_u32 s{sC1}, 0")
A("s_cbranch_scc1 L_hello")
A(f"s_mov_b32 s{sC1}, 1")
q1_store("sc1")
own_record(WS_HS, "sc1")
A("s_branch L_hello")
LBL("L_slow")
q1_store("sc1")
own_record(WS_HS, "sc1")
for i in range(4):
    A(f"v_mov_b32 {vr(AF+8+i)}, 0")
local_clears("sc1", AF+8)
A("s_waitcnt vmcnt(0)")
own_record(WS_HZ, "sc1")
A(f"v_add_u32 {vr(AF+14)}, {WS_HZ-WS_HF}, v15")
A(f"s_mov_b32 s{sSPIN}, 0")
LBL("L_hello2")
A(f"global_load_dwordx2 {vr(H,2)}, {vr(AF+14)}, {sp(S_WS)} sc1")
spin_check()
A("s_waitcnt vmcnt(0)")
A(f"v_and_b32 {vr(H+4)}, -16, {vr(H)}")
A(f"v_xor_b32 {vr(H+4)}, s{sNL}, {vr(H+4)}")
A(f"v_xor_b32 {vr(H+5)}, s{sNH}, {vr(H+1)}")
A(f"v_or_b32 {vr(H+4)}, {vr(H+4)}, {vr(H+5)}")
A(f"v_cmp_eq_u32 vcc, 0, {vr(H+4)}")
A("s_nop 1")
A("s_cmp_eq_u64 vcc, exec")
A("s_cbranch_scc0 L_hello2")
A(f"s_mov_b32 s{sMODE}, 0")
A("s_branch L_modew")
LBL("L_fast")
A(f"s_mov_b32 s{sMODE}, 1")
LBL("L_modew")
A(f"v_mov_b32 {vr(H)}, {L_MODE}")
A(f"v_mov_b32 {vr(H+1)}, s{sMODE}")
A(f"ds_write_b32 {vr(H)}, {vr(H+1)}")
A("s_waitcnt lgkmcnt(0)")
A("s_barrier")
A("s_barrier")
A(f"v_add_u32 v15, 65536, v5")
for r in range(16):
    base = "v5" if (r % 4) < 2 else "v15"
    A(f"ds_read_b128 {vr(WO+4*r,4)}, {base} offset:{(r%2)*32768 + (r//4)*1024}")
for r in range(8):
    base = "v5" if (r % 4) < 2 else "v15"
    A(f"ds_read_b128 {vr(W2+4*r,4)}, {base} offset:{(r%2)*32768 + (4 + r//4)*1024}")
A("s_waitcnt lgkmcnt(0)")
A(f"s_mov_b32 s{sC1}, 0x05040100")
A(f"s_mov_b32 s{sC3}, 0x07060302")
for base, npairs in ((WO, 8), (W2, 4)):
    for p in range(npairs):
        for k in range(4):
            ra = base + 8*p + k
            rb = base + 8*p + 4 + k
            A(f"v_perm_b32 {vr(T+8)}, {vr(rb)}, {vr(ra)}, s{sC1}")
            A(f"v_perm_b32 {vr(rb)}, {vr(rb)}, {vr(ra)}, s{sC3}")
            A(f"v_mov_b32 {vr(ra)}, {vr(T+8)}")
load_bfrags(vW1A, 512, 64)
LBL("L_ctrl_l2")
stamp(4)
A("v_lshrrev_b32 v15, 2, v0")
A("v_lshlrev_b32 v15, 3, v15")
A("v_sub_u32 v15, v15, v5")
A("v_add_u32 v15, v15, v6")
OB = AF
oa, ob, mla, mlb = AF, AF+8, AF+12, AF+14
poll([f"global_load_dwordx4 {vr(oa,4)}, v6, {sp(S_WS)}",
      f"global_load_dwordx4 {vr(ob,4)}, v6, {sp(S_WS)} offset:1024",
      f"global_load_dwordx2 {vr(mla,2)}, v15, {sp(S_WS)} offset:2048",
      f"global_load_dwordx2 {vr(mlb,2)}, v15, {sp(S_WS)} offset:2176"],
     [oa, ob, mla, mlb], T+8)
stamp(5)
mx, wa, wb, ls = AF+16, AF+17, AF+18, AF+19
A(f"v_max_f32 {vr(mx)}, {vr(mla)}, {vr(mlb)}")
allreduce("v_max_f32", [mx], [AF+20], [4, 8])
A(f"v_sub_f32 {vr(wa)}, {vr(mla)}, {vr(mx)}")
A(f"v_sub_f32 {vr(wb)}, {vr(mlb)}, {vr(mx)}")
A(f"v_mul_f32 {vr(wa)}, s{sC0}, {vr(wa)}")
A(f"v_mul_f32 {vr(wb)}, s{sC0}, {vr(wb)}")
A(f"v_exp_f32 {vr(wa)}, {vr(wa)}")
A(f"v_exp_f32 {vr(wb)}, {vr(wb)}")
nop(1)
A(f"v_mul_f32 {vr(ls)}, {vr(wa)}, {vr(mla+1)}")
A(f"v_fmac_f32 {vr(ls)}, {vr(wb)}, {vr(mlb+1)}")
for i in range(4):
    A(f"v_mul_f32 {vr(oa+i)}, {vr(wa)}, {vr(oa+i)}")
    A(f"v_fmac_f32 {vr(oa+i)}, {vr(wb)}, {vr(ob+i)}")
allreduce("v_add_f32", [ls, oa, oa+1, oa+2, oa+3], list(range(AF+20, AF+25)), [4, 8])
A(f"v_rcp_f32 {vr(ls)}, {vr(ls)}")
nop(1)
for i in range(4):
    A(f"v_mul_f32 {vr(oa+i)}, {vr(oa+i)}, {vr(ls)}")
A(f"v_cvt_pk_bf16_f32 {vr(OB+4)}, {vr(oa)}, {vr(oa+1)}")
A(f"v_cvt_pk_bf16_f32 {vr(OB+5)}, {vr(oa+2)}, {vr(oa+3)}")
dump([OB+4, OB+5], 0, 15)
nop(1)
for qq in range(4):
    for p in range(2):
        A(f"v_readlane_b32 s{sPK+2*qq+p}, {vr(OB+4+p)}, {qq}")
nop(2)
PA = AF+24


def dotpartial(base, npairs):
    for p in range(npairs):
        for c in range(8):
            w = base + 8*p + (c >> 1) + 4*(c & 1)
            if p == 0:
                A(f"v_dot2_f32_bf16 {vr(PA+c)}, s{sPK+p}, {vr(w)}, 0")
            else:
                A(f"v_dot2_f32_bf16 {vr(PA+c)}, s{sPK+p}, {vr(w)}, {vr(PA+c)}")
    nop(3)
    for c in (0, 4):
        A(f"v_bfi_b32 {vr(PA+c)}, 3, s{sTAG}, {vr(PA+c)}")


def publish_rs(wsbase):
    A(f"s_lshl_b32 s{sT2}, s{sG}, 16")
    A(f"s_lshl_b32 s{sT3}, s{sJ}, 6")
    A(f"s_add_u32 s{sT2}, s{sT2}, s{sT3}")
    A(f"s_add_u32 s{sT2}, s{sT2}, {wsbase}")
    A("v_lshrrev_b32 v15, 1, v0")
    A("v_lshlrev_b32 v15, 11, v15")
    A(f"v_and_b32 {vr(T+8)}, 1, v0")
    A(f"v_lshlrev_b32 {vr(T+8)}, 5, {vr(T+8)}")
    A(f"v_add3_u32 v15, v15, {vr(T+8)}, s{sT2}")
    A(f"s_mov_b64 exec, {sp(sM56)}")
    st_local([f"global_store_dwordx4 v15, {vr(PA,4)}, {sp(S_WS)}",
              f"global_store_dwordx4 v15, {vr(PA+4,4)}, {sp(S_WS)} offset:16"])
    A("s_mov_b64 exec, -1")


dotpartial(WO, 8)
publish_rs(WS_RS1)
stamp(6)
A(f"s_cmp_ge_u32 s{sJ}, 28")
A("s_cbranch_scc1 L_ctrl_skipmlp")


def xr_check():
    A(f"s_cmp_lg_u32 s{sLAYER}, 0")
    A("s_cbranch_scc1 L_xr_ok")
    A("v_lshlrev_b32 v15, 4, v0")
    A(f"s_lshl_b32 s{sT2}, s{sJ}, 6")
    A(f"s_add_u32 s{sT2}, s{sT2}, {WS_XR}")
    A(f"v_lshlrev_b32 {vr(AF+18)}, 3, v0")
    A(f"v_add_u32 {vr(AF+18)}, s{sT2}, {vr(AF+18)}")
    A(f"s_mov_b64 exec, {sp(sM8)}")
    A(f"s_mov_b32 s{sSPIN}, 0")
    LBL("L_xr")
    A(f"global_load_dwordx2 {vr(AF+12,2)}, v15, {sp(S_DBG)} offset:128 sc1")
    A(f"global_load_dwordx2 {vr(AF+14,2)}, {vr(AF+18)}, {sp(S_WS)} sc1")
    spin_check()
    A("s_waitcnt vmcnt(0)")
    A(f"v_xor_b32 {vr(AF+16)}, {vr(AF+12)}, {vr(AF+14)}")
    A(f"v_xor_b32 {vr(AF+17)}, {vr(AF+13)}, {vr(AF+15)}")
    A(f"v_or_b32 {vr(AF+16)}, {vr(AF+16)}, {vr(AF+17)}")
    A(f"v_cmp_eq_u32 {sp(sT0)}, 0, {vr(AF+16)}")
    A(f"v_cmp_gt_i32 vcc, 0, {vr(AF+13)}")
    A("s_nop 1")
    A(f"s_and_b64 vcc, vcc, {sp(sT0)}")
    A("s_cmp_eq_u64 vcc, exec")
    A("s_cbranch_scc0 L_xr")
    A("s_mov_b64 exec, -1")
    LBL("L_xr_ok")


def reduce_stage(vinbox, vxs, nprod, wsxs):
    a, b = AF, AF+4
    if nprod == 32:
        poll([f"global_load_dwordx4 {vr(a,4)}, v{vinbox}, {sp(S_WS)}",
              f"global_load_dwordx4 {vr(b,4)}, v{vinbox}, {sp(S_WS)} offset:1024"],
             [a, b], T+8)
    else:
        A(f"v_mov_b32 {vr(b)}, s{sTAG}")
        for i in range(1, 4):
            A(f"v_mov_b32 {vr(b+i)}, 0")
        poll([f"global_load_dwordx4 {vr(a,4)}, v{vinbox}, {sp(S_WS)}",
              "!s_mov_b32 exec_hi, 0xffff",
              f"global_load_dwordx4 {vr(b,4)}, v{vinbox}, {sp(S_WS)} offset:1024",
              "!s_mov_b64 exec, -1"],
             [a, b], T+8)
    for i in range(4):
        A(f"v_add_f32 {vr(a+i)}, {vr(a+i)}, {vr(b+i)}")
    allreduce("v_add_f32", [a, a+1, a+2, a+3], list(range(AF+8, AF+12)), [4, 8])
    A(f"v_bfi_b32 {vr(a)}, 3, s{sTAG}, {vr(a)}")
    A(f"s_mov_b64 exec, {sp(sM4)}")
    A(f"global_store_dwordx4 v{vxs}, {vr(a,4)}, {sp(S_WS)} sc1")
    A("s_mov_b64 exec, -1")
    if nprod == 32:
        xr_check()
    A(f"s_lshl_b32 s{sT2}, s{sJ}, 9")
    A(f"s_add_u32 s{sT2}, s{sT2}, {wsxs}")
    A(f"v_add_u32 v15, s{sT2}, v5")
    for i in range(4):
        A(f"v_mov_b32 {vr(b+i)}, 0")
    A(f"s_mov_b64 exec, {sp(sM32)}")
    poll([f"global_load_dwordx4 {vr(b,4)}, v15, {sp(S_WS)}"], [b], T+8)
    A("s_mov_b64 exec, -1")
    allreduce("v_add_f32", [b, b+1, b+2, b+3], list(range(AF+8, AF+12)), [4, 8], swap16=True, swap32=False)
    return b


def bf16round(regs, tmp):
    for i in range(0, len(regs), 2):
        A(f"v_cvt_pk_bf16_f32 {vr(tmp)}, {vr(regs[i])}, {vr(regs[i+1])}")
        A(f"v_lshlrev_b32 {vr(regs[i])}, 16, {vr(tmp)}")
        A(f"v_and_b32 {vr(regs[i+1])}, 0xffff0000, {vr(tmp)}")


def gather_x(wsxg):
    A(f"s_lshl_b32 s{sT2}, s{sG}, 11")
    A(f"s_add_u32 s{sT2}, s{sT2}, {wsxg}")
    A("v_lshlrev_b32 v15, 5, v0")
    A(f"v_add_u32 v15, s{sT2}, v15")
    A(f"s_mov_b64 exec, {sp(sM56)}")
    poll([f"global_load_dwordx4 {vr(X,4)}, v15, {sp(S_WS)}",
          f"global_load_dwordx4 {vr(X+4,4)}, v15, {sp(S_WS)} offset:16"],
         [X, X+4], T+8)
    for i in (0, 4):
        A(f"v_and_b32 {vr(X+i)}, 0xffff0000, {vr(X+i)}")
    A("s_mov_b64 exec, -1")


r = reduce_stage(7, 12, 32, WS_XS1)
bf16round([r, r+1, r+2, r+3], T+8)
for i in range(4):
    A(f"v_add_f32 {vr(XO+i)}, {vr(XO+i)}, {vr(r+i)}")
bf16round([XO, XO+1, XO+2, XO+3], T+8)
A(f"v_or_b32 {vr(r)}, s{sTAG}, {vr(XO)}")
for i in range(1, 4):
    A(f"v_mov_b32 {vr(r+i)}, {vr(XO+i)}")
A(f"s_mov_b64 exec, {sp(sM4)}")
st_local([f"global_store_dwordx4 v10, {vr(r,4)}, {sp(S_WS)}"])
A("s_mov_b64 exec, -1")
stamp(7)
gather_x(WS_XG1)
dump(list(range(X, X+8)), 2, 15)
Y = AF+16
layernorm(X, Y, PK, LNT)
A(f"s_mov_b64 exec, {sp(sM56)}")
A("s_not_b64 exec, exec")
for i in range(8):
    A(f"v_mov_b32 {vr(Y+i)}, 0")
A("s_mov_b64 exec, -1")
layernorm(Y, None, PK, LNT)
matvec(PK, ACC)
h = ACC
A(f"v_cvt_pk_bf16_f32 {vr(h)}, {vr(h)}, {vr(h)}")
A(f"v_lshlrev_b32 {vr(h)}, 16, {vr(h)}")
A(f"v_add_f32 {vr(h)}, {vr(h)}, {vr(B1)}")
A(f"v_cvt_pk_bf16_f32 {vr(h)}, {vr(h)}, {vr(h)}")
A(f"v_lshlrev_b32 {vr(h)}, 16, {vr(h)}")
A(f"v_mul_f32 {vr(h+1)}, {vr(h)}, {vr(h)}")
A(f"v_mul_f32 {vr(h+1)}, {vr(h+1)}, {vr(h)}")
A(f"v_mov_b32 {vr(h+2)}, {vr(h)}")
A(f"v_fmac_f32 {vr(h+2)}, 0x3d372713, {vr(h+1)}")
A(f"v_mul_f32 {vr(h+2)}, 0x40135761, {vr(h+2)}")
A(f"v_exp_f32 {vr(h+2)}, {vr(h+2)}")
nop(1)
A(f"v_add_f32 {vr(h+2)}, 1.0, {vr(h+2)}")
A(f"v_rcp_f32 {vr(h+2)}, {vr(h+2)}")
nop(1)
A(f"v_sub_f32 {vr(h+2)}, 1.0, {vr(h+2)}")
A(f"v_mul_f32 {vr(h)}, {vr(h)}, {vr(h+2)}")
A(f"v_cvt_pk_bf16_f32 {vr(h)}, {vr(h)}, {vr(h)}")
dump([h], 12, 15)
nop(1)
for p in range(4):
    A(f"v_readlane_b32 s{sRL}, {vr(h)}, {2*p}")
    A(f"v_readlane_b32 s{sRL+1}, {vr(h)}, {2*p+1}")
    nop(1)
    A(f"s_pack_ll_b32_b16 s{sPK+p}, s{sRL}, s{sRL+1}")
nop(2)
dotpartial(W2, 4)
publish_rs(WS_RS2)
stamp(8)
r = reduce_stage(8, 13, 28, WS_XS2)
bf16round([r, r+1, r+2, r+3], T+8)
for i in range(4):
    A(f"v_add_f32 {vr(r+i)}, {vr(r+i)}, {vr(B2O+i)}")
bf16round([r, r+1, r+2, r+3], T+8)
for i in range(4):
    A(f"v_add_f32 {vr(XO+i)}, {vr(XO+i)}, {vr(r+i)}")
bf16round([XO, XO+1, XO+2, XO+3], T+8)
A(f"s_cmp_lg_u32 s{sLAYER}, 0")
A("s_cbranch_scc1 L_ctrl_final")
A(f"v_or_b32 {vr(r)}, s{sTAG}, {vr(XO)}")
for i in range(1, 4):
    A(f"v_mov_b32 {vr(r+i)}, {vr(XO+i)}")
A(f"s_mov_b64 exec, {sp(sM4)}")
st_local([f"global_store_dwordx4 v11, {vr(r,4)}, {sp(S_WS)}"])
A("s_mov_b64 exec, -1")
LBL("L_ctrl_skipmlp")
A(f"s_cmp_lg_u32 s{sLAYER}, 0")
A("s_cbranch_scc1 L_ctrl_done")
stamp(9)
load_bfrags(vWQA, 1024, 128)
gather_x(WS_XG2)
dump(list(range(X, X+8)), 14, 15)
stamp(10)
stamp_flush(11, 0, T+8, T+9)
A(f"s_mov_b32 s{sLAYER}, 1")
A(f"s_mov_b32 s{sTAG}, 2")
A("s_branch L_ctrl_layer")

LBL("L_ctrl_final")
A(f"s_cmp_lg_u32 s{sG}, 0")
A("s_cbranch_scc1 L_ctrl_done")
A(f"v_cvt_pk_bf16_f32 {vr(T)}, {vr(XO)}, {vr(XO+1)}")
A(f"v_cvt_pk_bf16_f32 {vr(T+1)}, {vr(XO+2)}, {vr(XO+3)}")
A(f"s_mov_b64 exec, {sp(sM4)}")
A(f"global_store_dwordx2 v14, {vr(T,2)}, {sp(S_OUT)}")
A("s_mov_b64 exec, -1")
LBL("L_ctrl_done")
stamp(9)
stamp_flush(11, 16, T+8, T+9)
LBL("L_abort")
LBL("L_end")
A("s_endpgm")

lines.append('.section .rodata,"a"')
lines.append(".p2align 6")
lines.append(f".amdhsa_kernel {NAME}_kernel")
lines.append("  .amdhsa_next_free_vgpr 256")
lines.append("  .amdhsa_next_free_sgpr 102")
lines.append("  .amdhsa_accum_offset 256")
lines.append("  .amdhsa_group_segment_fixed_size 0")
lines.append("  .amdhsa_kernarg_size 104")
lines.append("  .amdhsa_user_sgpr_count 2")
lines.append("  .amdhsa_user_sgpr_kernarg_segment_ptr 1")
lines.append("  .amdhsa_system_sgpr_workgroup_id_x 1")
lines.append(".end_amdhsa_kernel")
open(OUT, "w").write("\n".join(lines) + "\n")
print("wrote", OUT, len(lines), "lines")
```

```python
import sys
import os

NAME = "interleave_layers__sliding_block_cached__mixer_channel_mlp__decode"
DEBUG = int(sys.argv[1]) if len(sys.argv) > 1 else 0
STAMP = int(sys.argv[2]) if len(sys.argv) > 2 else 0
OUT = sys.argv[3] if len(sys.argv) > 3 else f"cdna_kernels/{NAME}.s"
KVPOL = os.environ.get("KVPOL", "nt")
W2POL = os.environ.get("W2POL", "nt")
WPOL = os.environ.get("WPOL", "")
WIN = int(os.environ.get("WIN", "6"))
TOUCH = int(os.environ.get("TOUCH", "1"))
EXP = int(os.environ.get("EXP", "0"))
BK = int(os.environ.get("BK", "0"))
NP = int(os.environ.get("NP", "2"))
PRE = int(os.environ.get("PRE", "0"))

WS_Q = 0x000000
WS_XG1 = 0x010000
WS_XG2 = 0x020000
WS_XS1 = 0x030000
WS_XS2 = 0x040000
WS_HF = 0x050000
WS_HS = 0x051000
WS_HZ = 0x052000
WS_XR = 0x053000
WS_Q1 = 0x060000
WS_RS1 = 0x200000
WS_RS2 = 0x300000
WS_DBG = 0x400000
WS_STAMP = 0x800000
WS_H2 = 0x100000

L_WQ = 131072
L_W1 = L_WQ + 14336
L_XN = L_W1 + 7168
L_Q = L_XN + 1024
L_P = L_Q + 1024
L_M = L_P + 512
L_L = L_M + 32
L_MODE = L_L + 32
L_NONCE = L_MODE + 8
L_REL = L_NONCE + 8
LDS_BYTES = 155648

SPIN = 400000
TMO = 300
LOG2E = 0x3fb8aa3b
LOG2E16 = 0x3db8aa3b

lines = []
lab_id = [0]


def A(s):
    lines.append("    " + s)


def LBL(s):
    lines.append(s + ":")


def newlab(p):
    lab_id[0] += 1
    return f"L_{p}_{lab_id[0]}"


def vr(a, n=1):
    return f"v{a}" if n == 1 else f"v[{a}:{a+n-1}]"


def nop(n):
    while n > 0:
        k = min(n, 16)
        A(f"s_nop {k-1}")
        n -= k


S_X, S_K, S_V, S_WQ, S_WO, S_W1, S_B1, S_W2, S_B2, S_OUT, S_DBG, S_WS = 4, 6, 8, 10, 12, 16, 18, 20, 22, 24, 26, 28
sC3 = 3
sG, sJ, sW, sTAG, sMODE, sSPIN = 30, 31, 32, 33, 34, 35
sSB = 36
sT0 = 38
sT2 = 40
sT3 = 41
sVB = 42
sLB = 44
sJC = 45
sNL = 46
sNH = 47
sPK = 48
sM56 = 56
sM4 = 58
sM32 = 60
sM2 = 66
sM8 = 68
sM16 = 70
sC0 = 72
sC1 = 73
sC2 = 74
sREL = 75
sLAYER = 76
sRL = 77
sXCC = 79
sST = 80
sMH1 = 62
sMT1 = 64
sC4 = 37


def sp(a):
    return f"s[{a}:{a+1}]"


def st_local(items):
    lf = newlab("f")
    le = newlab("e")
    A(f"s_cmp_eq_u32 s{sMODE}, 1")
    A(f"s_cbranch_scc1 {lf}")
    for r in items:
        A(r[1:] if r.startswith("!") else f"{r} sc1")
    A(f"s_branch {le}")
    LBL(lf)
    for r in items:
        A(r[1:] if r.startswith("!") else r)
    LBL(le)


def spin_check(abort="L_abort"):
    A(f"s_add_u32 s{sSPIN}, s{sSPIN}, 1")
    A(f"s_cmp_gt_u32 s{sSPIN}, {SPIN}")
    A(f"s_cbranch_scc1 {abort}")


def poll(loads, regs, tmp):
    l = newlab("poll")
    A(f"s_mov_b32 s{sSPIN}, 0")
    LBL(l)
    for x in loads:
        A(x[1:] if x.startswith("!") else f"{x} sc1")
    spin_check()
    A("s_waitcnt vmcnt(0)")
    A(f"v_and_b32 {vr(tmp)}, s{sTAG}, {vr(regs[0])}")
    for r in regs[1:]:
        A(f"v_and_b32 {vr(tmp)}, {vr(tmp)}, {vr(r)}")
    A(f"v_cmp_ne_u32 vcc, 0, {vr(tmp)}")
    A("s_nop 1")
    A("s_cmp_eq_u64 vcc, exec")
    if BK:
        ld = newlab("pd")
        A(f"s_cbranch_scc1 {ld}")
        A(f"s_sleep {BK}")
        A(f"s_branch {l}")
        LBL(ld)
    else:
        A(f"s_cbranch_scc0 {l}")


def dpp(op, d, s, ror):
    A(f"{op}_dpp {vr(d)}, {vr(s)}, {vr(d)} row_ror:{ror} row_mask:0xf bank_mask:0xf")


def allreduce(op, regs, tmps, rors, swap16=True, swap32=True):
    n = len(regs)
    if rors:
        nop(2)
    for ro in rors:
        for r in regs:
            dpp(op, r, r, ro)
        if n < 3:
            nop(3 - n)
    for which, en in (("16", swap16), ("32", swap32)):
        if not en:
            continue
        for r, t in zip(regs, tmps):
            A(f"v_mov_b32 {vr(t)}, {vr(r)}")
        nop(2)
        for r, t in zip(regs, tmps):
            A(f"v_permlane{which}_swap_b32 {vr(r)}, {vr(t)}")
        nop(1)
        for r, t in zip(regs, tmps):
            A(f"{op} {vr(r)}, {vr(r)}, {vr(t)}")


def dump(regs, slot, atmp):
    if not DEBUG:
        return
    A(f"s_lshl_b32 s{sT2}, s2, 14")
    A(f"s_add_u32 s{sT2}, s{sT2}, {WS_DBG + slot*256}")
    A(f"v_lshlrev_b32 {vr(atmp)}, 2, v0")
    A(f"v_add_u32 {vr(atmp)}, s{sT2}, {vr(atmp)}")
    for i, r in enumerate(regs):
        A(f"global_store_dword {vr(atmp)}, {vr(r)}, {sp(S_WS)} offset:{i*256}")


def stamp(idx):
    if not STAMP:
        return
    A(f"s_memrealtime s[{sST+2*idx}:{sST+2*idx+1}]")


def stamp_flush(n, base_slot, vt, vt2):
    if not STAMP:
        return
    A("s_waitcnt lgkmcnt(0)")
    A(f"s_lshl_b32 s{sT2}, s2, 3")
    A(f"s_add_u32 s{sT2}, s{sT2}, s{sW}")
    A(f"s_lshl_b32 s{sT2}, s{sT2}, 8")
    A(f"s_add_u32 s{sT2}, s{sT2}, {WS_STAMP + base_slot*4}")
    A(f"v_mov_b32 {vr(vt)}, s{sT2}")
    for i in range(n):
        A(f"v_mov_b32 {vr(vt2)}, s{sST+2*i}")
        A(f"global_store_dword {vr(vt)}, {vr(vt2)}, {sp(S_WS)} offset:{4*i}")
        nop(1)


hdr = open(f"cdna_kernels/{NAME}.s.ref").read().split("\n")
for h in hdr:
    if h.startswith("; @launch"):
        lines.append(f"; @launch grid=(256,1,1) block=(320,1,1) lds={LDS_BYTES}")
        break
    lines.append(h)
lines.append('.amdgcn_target "amdgcn-amd-amdhsa--gfx950"')
lines.append(".text")
lines.append(f".globl {NAME}_kernel")
lines.append(".p2align 8")
lines.append(f".type {NAME}_kernel,@function")
LBL(f"{NAME}_kernel")

A("s_cmp_ge_u32 s2, 256")
A("s_cbranch_scc1 L_end")
stamp(0)
A("s_load_dwordx16 s[4:19], s[0:1], 0")
A("s_load_dwordx8 s[20:27], s[0:1], 64")
A("s_load_dwordx2 s[28:29], s[0:1], 96")
A(f"s_and_b32 s{sG}, s2, 7")
A(f"s_lshr_b32 s{sJ}, s2, 3")
A(f"s_min_u32 s{sJC}, s{sJ}, 27")
A("v_lshrrev_b32 v1, 6, v0")
A("v_and_b32 v0, 63, v0")
A("s_nop 1")
A(f"v_readfirstlane_b32 s{sW}, v1")
A(f"s_mov_b32 s{sTAG}, 1")
A(f"s_mov_b32 s{sMODE}, 0")
A(f"s_mov_b32 s{sLAYER}, 0")
for r, (lo, hi) in {sM56: (-1, 0x00ffffff), sM4: (15, 0), sM32: (-1, 0), sM2: (0x00030003, 0x00030003),
                    sM8: (0xff, 0), sM16: (0xffff, 0), sMH1: (0xffff0000, 0xffff0000), sMT1: (0, -1)}.items():
    A(f"s_mov_b32 s{r}, {lo}")
    A(f"s_mov_b32 s{r+1}, {hi}")
A(f"s_mov_b32 s{sC0}, {LOG2E:#x}")
A(f"s_mov_b32 s{sC4}, {LOG2E16:#x}")
A("s_waitcnt lgkmcnt(0)")
A(f"s_cmp_eq_u32 s{sW}, 4")
A("s_cbranch_scc1 L_ctrl")

KF, VF, QF, SA, PF, OA = 16, 80, 144, 176, 184, 200
vKA = 216
vVA = 224
vQA, vPA, vPW, vMW, vMR, vMR2, vOS, vML = 228, 229, 230, 231, 232, 233, 234, 235
vt = 236

A(f"s_lshl_b32 s{sT2}, s{sG}, 25")
A(f"s_add_u32 s{sT2}, s{sT2}, 31457280")
A(f"s_lshl_b32 s{sT3}, s{sJ}, 16")
A(f"s_add_u32 s{sT2}, s{sT2}, s{sT3}")
A(f"s_lshl_b32 s{sT3}, s{sW}, 14")
A(f"s_add_u32 s{sT3}, s{sT2}, s{sT3}")
A(f"s_add_u32 s{sT0}, s{S_K}, s{sT3}")
A(f"s_addc_u32 s{sT0+1}, s{S_K+1}, 0")
A(f"s_lshl_b32 s{sT3}, s{sW}, 7")
A(f"s_add_u32 s{sT3}, s{sT2}, s{sT3}")
A(f"s_add_u32 s{sVB}, s{S_V}, s{sT3}")
A(f"s_addc_u32 s{sVB+1}, s{S_V+1}, 0")
A(f"s_lshl_b32 s{sLB}, s{sW}, 15")
A(f"s_lshl_b32 s{sT2}, s{sG}, 4")
A(f"v_mov_b32 v10, s{sT2}")
A("v_mov_b32 v8, 0")
A("v_mov_b32 v9, 0")
A(f"s_or_b32 s{sT2}, s{sJ}, s{sW}")
A(f"s_cmp_lg_u32 s{sT2}, 0")
A("s_cbranch_scc1 L_att_nolead")
A(f"s_memrealtime s[{sPK}:{sPK+1}]")
A("s_waitcnt lgkmcnt(0)")
A(f"s_and_b32 s{sPK+2}, s{sPK}, 0xfffffff0")
A(f"s_or_b32 s{sPK+3}, s{sPK+1}, 0x80000000")
A(f"v_mov_b32 v8, s{sPK+2}")
A(f"v_mov_b32 v9, s{sPK+3}")
A("s_mov_b64 exec, 1")
A(f"global_store_dwordx2 v10, v[8:9], {sp(S_DBG)}")
A("s_mov_b64 exec, -1")
LBL("L_att_nolead")
A("v_lshrrev_b32 v1, 5, v0")
A("v_and_b32 v2, 31, v0")
A("v_xor_b32 v2, v2, v1")
A("v_lshlrev_b32 v2, 4, v2")
A("v_lshlrev_b32 v1, 9, v1")
A("v_or_b32 v2, v2, v1")
A("v_lshrrev_b32 v1, 3, v0")
A("v_and_b32 v4, 7, v0")
A("v_lshrrev_b32 v5, 1, v4")
A("v_lshrrev_b32 v6, 1, v1")
A("v_and_b32 v6, 1, v6")
A("v_xor_b32 v5, v5, v6")
A("v_lshlrev_b32 v5, 5, v5")
A("v_and_b32 v4, 1, v4")
A("v_lshlrev_b32 v4, 4, v4")
A("v_or_b32 v5, v5, v4")
A("v_lshlrev_b32 v1, 9, v1")
A("v_or_b32 v5, v5, v1")
A("v_xor_b32 v6, 64, v5")
A(f"v_mov_b32 v11, {L_REL}")
A(f"s_mov_b32 s{sREL}, 0")
if TOUCH:
    A("v_mov_b32 v13, 0")
    A(f"v_mov_b32 v14, {WS_RS1}")
    for w, lst in enumerate((((S_WS, "v13"), (S_DBG, "v13")), ((S_WS, "v14"), (S_OUT, "v13")), ((S_WO, "v13"), (S_W2, "v13")), ((S_W1, "v13"), (S_V, "v13")))):
        l = newlab("tch")
        A(f"s_cmp_lg_u32 s{sW}, {w}")
        A(f"s_cbranch_scc1 {l}")
        for (sb, va) in lst:
            A(f"global_load_dword v15, {va}, {sp(sb)}")
        LBL(l)
if PRE == 0:
    A("s_barrier")
    stamp(4)


def throttle():
    l = newlab("go")
    A(f"s_cmp_lg_u32 s{sREL}, 0")
    A(f"s_cbranch_scc1 {l}")
    A("ds_read_b32 v12, v11")
    A("s_waitcnt lgkmcnt(0)")
    A(f"v_readfirstlane_b32 s{sREL}, v12")
    A(f"s_waitcnt vmcnt({WIN-1})")
    LBL(l)


for i in range(16):
    blk = i >> 2
    if (i & 3) == 0:
        A(f"s_add_u32 m0, s{sLB}, {4096*blk}")
    c = ((2 * i) & 14) * 16
    A(f"v_xor_b32 v3, {c}, v2")
    A(f"v_add_u32 v3, {4096*blk}, v3")
    if i >= WIN:
        throttle()
    A(f"global_load_lds_dwordx4 v3, {sp(sT0)} offset:{1024*(i&3)} {KVPOL}")
    if PRE and i == PRE - 1:
        A("s_barrier")
        stamp(4)
for i in range(16):
    A(f"s_add_u32 m0, s{sLB}, {16384 + 1024*i}")
    A(f"v_add_u32 v3, {4096*i}, v{5 + (i & 1)}")
    if 16 + i >= WIN:
        throttle()
    A(f"global_load_lds_dwordx4 v3, {sp(sVB)} {KVPOL}")
A("v_and_b32 v1, 15, v0")
A("v_lshrrev_b32 v2, 4, v0")
A("v_xor_b32 v3, v2, v1")
A("v_lshlrev_b32 v3, 4, v3")
A("v_lshlrev_b32 v4, 9, v1")
A("v_or_b32 v3, v3, v4")
A(f"v_add_u32 v3, s{sLB}, v3")
A(f"v_mov_b32 {vr(vKA)}, v3")
A("v_lshrrev_b32 v3, 2, v1")
A("v_and_b32 v4, 3, v0")
A("v_lshrrev_b32 v5, 1, v3")
A("v_and_b32 v5, 1, v5")
A("v_and_b32 v6, 1, v2")
A("v_lshlrev_b32 v6, 1, v6")
A("v_or_b32 v5, v5, v6")
A("v_lshlrev_b32 v6, 3, v2")
A("v_add_u32 v6, v6, v3")
A("v_lshlrev_b32 v6, 7, v6")
A("v_lshlrev_b32 v4, 3, v4")
A("v_add_u32 v6, v6, v4")
A(f"v_add_u32 v6, s{sLB}, v6")
A("v_add_u32 v6, 16384, v6")
for t in range(4):
    A(f"v_xor_b32 v7, {t}, v5")
    A("v_lshlrev_b32 v7, 5, v7")
    A(f"v_add_u32 {vr(vVA+t)}, v6, v7")
A("v_and_b32 v3, 1, v0")
A("v_lshlrev_b32 v4, 4, v2")
A("v_lshlrev_b32 v5, 9, v3")
A("v_add_u32 v5, v5, v4")
A(f"v_add_u32 {vr(vQA)}, {L_Q}, v5")
A("v_lshlrev_b32 v5, 8, v3")
A("v_add_u32 v5, v5, v4")
A(f"v_add_u32 {vr(vPA)}, {L_P}, v5")
A("v_lshlrev_b32 v5, 2, v3")
A(f"v_add_u32 {vr(vMR2)}, {L_M}, v5")
A("v_and_b32 v4, 1, v2")
A("v_lshlrev_b32 v5, 8, v4")
A("v_lshrrev_b32 v6, 1, v2")
A("v_lshlrev_b32 v6, 4, v6")
A("v_add_u32 v6, v6, v1")
A(f"s_lshl_b32 s{sT2}, s{sW}, 5")
A(f"v_add_u32 v6, s{sT2}, v6")
A("v_lshlrev_b32 v6, 1, v6")
A("v_add_u32 v5, v5, v6")
A(f"v_add_u32 {vr(vPW)}, {L_P}, v5")
A("v_lshlrev_b32 v5, 2, v4")
A(f"v_add_u32 {vr(vMR)}, {L_M}, v5")
A(f"s_lshl_b32 s{sT2}, s{sW}, 3")
A(f"v_add_u32 {vr(vMW)}, s{sT2}, {vr(vMR)}")
A(f"s_lshl_b32 s{sT2}, s{sG}, 5")
A(f"s_lshl_b32 s{sT3}, s{sW}, 2")
A(f"s_add_u32 s{sT2}, s{sT2}, s{sT3}")
A(f"s_lshl_b32 s{sT2}, s{sT2}, 12")
A(f"s_lshl_b32 s{sT3}, s{sJ}, 6")
A(f"s_add_u32 s{sT2}, s{sT2}, s{sT3}")
A(f"s_add_u32 s{sT2}, s{sT2}, {WS_H2}")
A("v_lshlrev_b32 v5, 16, v3")
A("v_lshlrev_b32 v6, 4, v2")
A("v_add_u32 v5, v5, v6")
A(f"v_add_u32 {vr(vOS)}, s{sT2}, v5")
A(f"s_lshl_b32 s{sT2}, s{sG}, 5")
A(f"s_lshl_b32 s{sT3}, s{sW}, 2")
A(f"s_add_u32 s{sT2}, s{sT2}, s{sT3}")
A(f"s_lshl_b32 s{sT2}, s{sT2}, 12")
A(f"s_lshl_b32 s{sT3}, s{sJ}, 3")
A(f"s_add_u32 s{sT2}, s{sT2}, s{sT3}")
A(f"s_add_u32 s{sT2}, s{sT2}, {WS_H2 + 2048}")
A("v_lshlrev_b32 v5, 16, v3")
A("v_lshrrev_b32 v6, 1, v0")
A("v_and_b32 v6, 3, v6")
A("v_lshlrev_b32 v6, 12, v6")
A("v_add_u32 v5, v5, v6")
A(f"v_add_u32 {vr(vML)}, s{sT2}, v5")

A("s_waitcnt vmcnt(16)")
for kk in range(8):
    A(f"v_xor_b32 v3, {64*kk}, {vr(vKA)}")
    for t in range(2):
        A(f"ds_read_b128 {vr(KF+(t*8+kk)*4,4)}, v3 offset:{t*8192}")
stamp(1)
A("s_waitcnt lgkmcnt(0)")
A("v_lshlrev_b32 v1, 4, v0")
A(f"s_lshl_b32 s{sT2}, s{sG}, 5")
A(f"s_add_u32 s{sT2}, s{sT2}, s{sJ}")
A(f"s_mul_i32 s{sT2}, s{sT2}, 14336")
A(f"s_mul_i32 s{sT3}, s{sW}, 896")
A(f"s_add_u32 s{sT2}, s{sT2}, s{sT3}")
A(f"v_add_u32 v2, s{sT2}, v1")
A(f"s_mul_i32 s{sT2}, s{sG}, 28")
A(f"s_add_u32 s{sT2}, s{sT2}, s{sJC}")
A(f"s_mul_i32 s{sC1}, s{sT2}, 7168")
A(f"s_add_u32 s{sC1}, s{sC1}, s{sT3}")
A(f"v_add_u32 v4, s{sC1}, v1")
A(f"s_mov_b64 exec, {sp(sM56)}")
for i in range(4):
    A(f"s_add_u32 m0, s{sLB}, {1024*i}")
    A(f"v_add_u32 v3, {3584*i}, v2")
    A(f"global_load_lds_dwordx4 v3, {sp(S_WO)} {W2POL}")
for i in range(2):
    A(f"s_add_u32 m0, s{sLB}, {1024*(4+i)}")
    A(f"v_add_u32 v3, {3584*i}, v4")
    A(f"global_load_lds_dwordx4 v3, {sp(S_W2)} {W2POL}")
A("s_mov_b64 exec, -1")
A(f"s_lshl_b32 s{sT3}, s{sT2}, 4")
A(f"s_mov_b32 s{sC1}, 3584")
A(f"v_mul_lo_u32 v2, s{sC1}, v0")
A(f"s_mul_i32 s{sC1}, s{sW}, 229376")
A(f"s_add_u32 s{sT3}, s{sT3}, s{sC1}")
A(f"v_add_u32 v2, s{sT3}, v2")
A(f"s_lshl_b32 s{sT2}, s{sW}, 10")
A(f"s_add_u32 m0, s{sT2}, {L_W1}")
A("s_nop 0")
A(f"global_load_lds_dwordx4 v2, {sp(S_W1)} {WPOL}")
A(f"s_cmp_eq_u32 s{sW}, 3")
A("s_cbranch_scc1 L_att_now1")
A(f"s_add_u32 m0, s{sT2}, {L_W1 + 4096}")
A(f"v_add_u32 v2, {229376*4}, v2")
A(f"global_load_lds_dwordx4 v2, {sp(S_W1)} {WPOL}")
LBL("L_att_now1")
A(f"s_cmp_lg_u32 s{sW}, 0")
A("s_cbranch_scc1 L_att_nox")
A(f"s_cmp_lg_u32 s{sJ}, 0")
A("s_cbranch_scc1 L_att_nolead2")
A("s_mov_b64 exec, 1")
A(f"global_store_dwordx2 v10, v[8:9], {sp(S_DBG)} offset:128 sc1")
A("s_mov_b64 exec, -1")
LBL("L_att_nolead2")
for i in range(4):
    A(f"v_mov_b32 v{12+i}, 0")
A(f"s_lshl_b32 s{sT2}, s{sJ}, 9")
A(f"s_lshl_b32 s{sT3}, s{sG}, 6")
A(f"s_add_u32 s{sT2}, s{sT2}, s{sT3}")
A(f"s_add_u32 s{sT2}, s{sT2}, {WS_XS1}")
A("v_lshlrev_b32 v11, 4, v0")
A(f"v_add_u32 v11, s{sT2}, v11")
A(f"v_add_u32 v7, {WS_XS2-WS_XS1}, v11")
A(f"s_mov_b64 exec, {sp(sM4)}")
A(f"global_store_dwordx4 v11, v[12:15], {sp(S_WS)} sc1")
A(f"global_store_dwordx4 v7, v[12:15], {sp(S_WS)} sc1")
A("s_mov_b64 exec, -1")
LBL("L_att_nox")
if EXP:
    A("s_waitcnt vmcnt(0)")
    stamp(2)
    stamp(3)
    stamp_flush(5, 0, vt, vt+1)
    A("s_endpgm")

LBL("L_att_layer")
A("s_barrier")
for kk in range(8):
    A(f"ds_read_b128 {vr(QF+4*kk,4)}, {vr(vQA)} offset:{64*kk}")
for kk in range(8):
    if kk % 2 == 0:
        A(f"s_waitcnt lgkmcnt({6-kk})")
    for t in range(2):
        c = "0" if kk == 0 else vr(SA+4*t, 4)
        A(f"v_mfma_f32_16x16x32_bf16 {vr(SA+4*t,4)}, {vr(QF+4*kk,4)}, {vr(KF+(t*8+kk)*4,4)}, {c}")
nop(9)
A(f"v_cndmask_b32 {vr(vt)}, {vr(SA)}, {vr(SA+1)}, {sp(sMH1)}")
A(f"v_cndmask_b32 {vr(vt+1)}, {vr(SA+4)}, {vr(SA+5)}, {sp(sMH1)}")
A(f"v_cndmask_b32 {vr(vt)}, {vr(vt)}, {vr(vt+1)}, {sp(sMT1)}")
A(f"v_cvt_pk_bf16_f32 {vr(vt)}, {vr(vt)}, {vr(vt)}")
A(f"v_lshlrev_b32 {vr(vt)}, 16, {vr(vt)}")
A(f"v_mul_f32 {vr(vt)}, 0x3d800000, {vr(vt)}")
A(f"v_mov_b32 {vr(vt+1)}, {vr(vt)}")
allreduce("v_max_f32", [vt+1], [vt+2], [8, 4, 2, 1], swap16=False, swap32=True)
A(f"ds_write_b32 {vr(vMW)}, {vr(vt+1)}")
A("s_waitcnt lgkmcnt(0)")
A("s_barrier")
A(f"ds_read2_b32 {vr(vt+2,2)}, {vr(vMR)} offset0:0 offset1:2")
A(f"ds_read2_b32 {vr(vt+4,2)}, {vr(vMR)} offset0:4 offset1:6")
A("s_waitcnt lgkmcnt(0)")
A(f"v_max_f32 {vr(vt+2)}, {vr(vt+2)}, {vr(vt+3)}")
A(f"v_max3_f32 {vr(vt+2)}, {vr(vt+2)}, {vr(vt+4)}, {vr(vt+5)}")
A(f"v_sub_f32 {vr(vt)}, {vr(vt)}, {vr(vt+2)}")
A(f"v_mul_f32 {vr(vt)}, s{sC0}, {vr(vt)}")
A(f"v_exp_f32 {vr(vt)}, {vr(vt)}")
nop(1)
A(f"v_cvt_pk_bf16_f32 {vr(vt+1)}, {vr(vt)}, {vr(vt)}")
A(f"ds_write_b16 {vr(vPW)}, {vr(vt+1)}")
allreduce("v_add_f32", [vt], [vt+2], [8, 4, 2, 1], swap16=False, swap32=True)
A(f"ds_write_b32 {vr(vMW)}, {vr(vt)} offset:32")
A(f"s_cmp_lg_u32 s{sLAYER}, 0")
A("s_cbranch_scc1 L_att_skipv")
A(f"s_cmp_eq_u32 s{sW}, 0")
A("s_cbranch_scc1 L_att_vw0")
A(f"s_cmp_eq_u32 s{sW}, 3")
A("s_cbranch_scc1 L_att_vw3")
A("s_waitcnt vmcnt(8)")
A("s_branch L_att_vwd")
LBL("L_att_vw3")
A("s_waitcnt vmcnt(7)")
A("s_branch L_att_vwd")
LBL("L_att_vw0")
A("s_waitcnt vmcnt(10)")
LBL("L_att_vwd")
for t in range(4):
    for ks in range(4):
        for hh in range(2):
            A(f"ds_read_b64_tr_b16 {vr(VF+(t*4+ks)*4+2*hh,2)}, {vr(vVA+t)} offset:{ks*4096+hh*512}")
stamp(2)
LBL("L_att_skipv")
A("s_waitcnt lgkmcnt(0)")
A("s_barrier")
for ks in range(4):
    A(f"ds_read_b128 {vr(PF+4*ks,4)}, {vr(vPA)} offset:{64*ks}")
A(f"ds_read2_b32 {vr(vt+2,2)}, {vr(vMR2)} offset0:0 offset1:2")
A(f"ds_read2_b32 {vr(vt+4,2)}, {vr(vMR2)} offset0:4 offset1:6")
A(f"ds_read2_b32 {vr(vt+6,2)}, {vr(vMR2)} offset0:8 offset1:10")
A(f"ds_read2_b32 {vr(vt+8,2)}, {vr(vMR2)} offset0:12 offset1:14")
A(f"v_mov_b32 {vr(vt)}, {L_MODE}")
A(f"ds_read_b32 {vr(vt+1)}, {vr(vt)}")
for ks in range(4):
    A(f"s_waitcnt lgkmcnt({8-ks})")
    for t in range(4):
        c = "0" if ks == 0 else vr(OA+4*t, 4)
        A(f"v_mfma_f32_16x16x32_bf16 {vr(OA+4*t,4)}, {vr(VF+(t*4+ks)*4,4)}, {vr(PF+4*ks,4)}, {c}")
A("s_waitcnt lgkmcnt(0)")
A(f"v_readfirstlane_b32 s{sMODE}, {vr(vt+1)}")
A(f"v_max_f32 {vr(vt+2)}, {vr(vt+2)}, {vr(vt+3)}")
A(f"v_max3_f32 {vr(vt+2)}, {vr(vt+2)}, {vr(vt+4)}, {vr(vt+5)}")
A(f"v_add_f32 {vr(vt+3)}, {vr(vt+6)}, {vr(vt+7)}")
A(f"v_add_f32 {vr(vt+4)}, {vr(vt+8)}, {vr(vt+9)}")
A(f"v_add_f32 {vr(vt+3)}, {vr(vt+3)}, {vr(vt+4)}")
A(f"v_bfi_b32 {vr(vt+2)}, 3, s{sTAG}, {vr(vt+2)}")
for t in range(1, 4):
    A(f"v_add_u32 {vr(vt+3+t)}, {4096*t}, {vr(vOS)}")
A(f"s_mov_b64 exec, {sp(sM8)}")
st_local([f"global_store_dwordx2 {vr(vML)}, {vr(vt+2,2)}, {sp(S_WS)}"])
for t in range(4):
    A(f"v_bfi_b32 {vr(OA+4*t)}, 3, s{sTAG}, {vr(OA+4*t)}") if False else None
A(f"s_mov_b64 exec, {sp(sM2)}")
for t in range(4):
    A(f"v_bfi_b32 {vr(OA+4*t)}, 3, s{sTAG}, {vr(OA+4*t)}")
st_local([
    f"global_store_dwordx4 {vr(vOS)}, {vr(OA,4)}, {sp(S_WS)}",
    f"global_store_dwordx4 {vr(vt+4)}, {vr(OA+4,4)}, {sp(S_WS)}",
    f"global_store_dwordx4 {vr(vt+5)}, {vr(OA+8,4)}, {sp(S_WS)}",
    f"global_store_dwordx4 {vr(vt+6)}, {vr(OA+12,4)}, {sp(S_WS)}"])
A("s_mov_b64 exec, -1")
A(f"s_cmp_lg_u32 s{sLAYER}, 0")
A("s_cbranch_scc1 L_att_noxr")
A("s_waitcnt vmcnt(0)")
A("s_barrier")
A(f"s_cmp_lg_u32 s{sW}, 0")
A("s_cbranch_scc1 L_att_noxr")
A(f"v_mov_b32 {vr(vt+2)}, {L_NONCE}")
A(f"ds_read_b64 {vr(vt+4,2)}, {vr(vt+2)}")
A(f"s_lshl_b32 s{sT2}, s{sJ}, 6")
A(f"s_lshl_b32 s{sT3}, s{sG}, 3")
A(f"s_add_u32 s{sT2}, s{sT2}, s{sT3}")
A(f"s_add_u32 s{sT2}, s{sT2}, {WS_XR}")
A(f"v_mov_b32 {vr(vt+2)}, s{sT2}")
A("s_waitcnt lgkmcnt(0)")
A("s_mov_b64 exec, 1")
A(f"global_store_dwordx2 {vr(vt+2)}, {vr(vt+4,2)}, {sp(S_WS)} sc1")
A("s_mov_b64 exec, -1")
LBL("L_att_noxr")
A(f"s_add_u32 s{sLAYER}, s{sLAYER}, 1")
A(f"s_lshl_b32 s{sTAG}, s{sTAG}, 1")
A(f"s_cmp_lt_u32 s{sLAYER}, 2")
A("s_cbranch_scc1 L_att_layer")
stamp(3)
stamp_flush(5, 0, vt, vt+1)
A("s_endpgm")

BF, AF, WO, W2, X = 16, 72, 128, 192, 224
XO, B2O, B1 = 232, 236, 255
T = 240
vZ = 80
LBL("L_ctrl")
for i in range(4):
    A(f"v_mov_b32 v{vZ+i}, 0")
for i in range(8):
    A(f"v_mov_b32 {vr(X+i)}, 0")
    A(f"v_mov_b32 {vr(AF+i)}, 0")
A("v_lshlrev_b32 v5, 4, v0")
A(f"s_mov_b64 exec, {sp(sM56)}")
A(f"global_load_dwordx4 {vr(AF,4)}, v5, {sp(S_X)}")
A("s_mov_b64 exec, -1")
A("v_and_b32 v14, 3, v0")
A("v_lshlrev_b32 v14, 3, v14")
A(f"s_lshl_b32 s{sT2}, s{sJC}, 5")
A(f"v_add_u32 v14, s{sT2}, v14")
A(f"global_load_dwordx2 {vr(T,2)}, v14, {sp(S_X)}")
A(f"global_load_dwordx2 {vr(B2O,2)}, v14, {sp(S_B2)}")
A(f"s_mul_i32 s{sT2}, s{sG}, 28")
A(f"s_add_u32 s{sT2}, s{sT2}, s{sJC}")
A(f"s_lshl_b32 s{sT3}, s{sT2}, 4")
A(f"v_and_b32 {vr(T+3)}, 7, v0")
A(f"v_lshlrev_b32 {vr(T+3)}, 1, {vr(T+3)}")
A(f"v_add_u32 {vr(T+3)}, s{sT3}, {vr(T+3)}")
A(f"global_load_ushort {vr(B1)}, {vr(T+3)}, {sp(S_B1)}")
A("v_lshrrev_b32 v15, 1, v0")
A("v_lshlrev_b32 v15, 13, v15")
A(f"v_and_b32 {vr(T+2)}, 1, v0")
A(f"v_lshlrev_b32 {vr(T+2)}, 4, {vr(T+2)}")
A(f"v_add_u32 v15, v15, {vr(T+2)}")
A(f"s_lshl_b32 s{sT2}, s{sG}, 10")
A(f"s_lshl_b32 s{sT3}, s{sJ}, 5")
A(f"s_add_u32 s{sT2}, s{sT2}, s{sT3}")
A(f"v_add_u32 v15, s{sT2}, v15")
for i in range(14):
    A(f"s_mov_b32 m0, {L_WQ + 1024*i}")
    A(f"v_add_u32 {vr(T+2)}, {262144*i}, v15")
    A(f"global_load_lds_dwordx4 {vr(T+2)}, {sp(S_WQ)} {WPOL}")
A(f"s_lshl_b32 s{sT2}, s{sG}, 5")
A(f"s_add_u32 s{sT2}, s{sT2}, s{sJ}")
A(f"s_lshl_b32 s{sT3}, s{sT2}, 12")
A(f"s_add_u32 s{sT3}, s{sT3}, {WS_H2}")
A(f"v_add_u32 v6, s{sT3}, v5")
A(f"s_lshl_b32 s{sT3}, s{sT2}, 11")
A(f"s_add_u32 s{sT3}, s{sT3}, {WS_RS1}")
A(f"v_add_u32 v7, s{sT3}, v5")
A(f"v_add_u32 v8, {WS_RS2-WS_RS1}, v7")
A(f"s_lshl_b32 s{sT2}, s{sG}, 11")
A(f"s_lshl_b32 s{sT3}, s{sJ}, 6")
A(f"s_add_u32 s{sT2}, s{sT2}, s{sT3}")
A(f"v_add_u32 v9, s{sT2}, v5")
A(f"v_add_u32 v10, {WS_XG1}, v9")
A(f"v_add_u32 v11, {WS_XG2}, v9")
A(f"s_lshl_b32 s{sT2}, s{sJ}, 9")
A(f"s_lshl_b32 s{sT3}, s{sG}, 6")
A(f"s_add_u32 s{sT2}, s{sT2}, s{sT3}")
A(f"s_add_u32 s{sT2}, s{sT2}, {WS_XS1}")
A(f"v_add_u32 v12, s{sT2}, v5")
A(f"v_add_u32 v13, {WS_XS2-WS_XS1}, v12")


def local_clears(pol, z):
    for i in range(2):
        A(f"global_store_dwordx4 v6, {vr(z,4)}, {sp(S_WS)} offset:{1024*i} {pol}")
    A(f"s_mov_b64 exec, {sp(sM16)}")
    A(f"global_store_dwordx4 v6, {vr(z,4)}, {sp(S_WS)} offset:2048 {pol}")
    A("s_mov_b64 exec, -1")
    for r in (7, 8):
        for i in range(2):
            A(f"global_store_dwordx4 v{r}, {vr(z,4)}, {sp(S_WS)} offset:{1024*i} {pol}")
    A(f"s_mov_b64 exec, {sp(sM4)}")
    for r in (9, 10, 11):
        A(f"global_store_dwordx4 v{r}, {vr(z,4)}, {sp(S_WS)} {pol}")
    A("s_mov_b64 exec, -1")


local_clears("", vZ)
A(f"v_mov_b32 {vr(T+4)}, {L_REL}")
A(f"ds_write_b32 {vr(T+4)}, v{vZ}")
A("s_waitcnt lgkmcnt(0)")
A(f"s_getreg_b32 s{sXCC}, hwreg(HW_REG_XCC_ID)")
A(f"s_and_b32 s{sXCC}, s{sXCC}, 15")
A(f"s_lshl_b32 s{sT2}, s{sG}, 4")
A(f"v_mov_b32 v15, s{sT2}")
A(f"s_mov_b32 s{sSPIN}, 0")
A(f"v_mov_b32 {vr(T+4)}, 0")
A(f"v_mov_b32 {vr(T+5)}, 0")
A(f"global_load_dwordx2 {vr(T+2,2)}, v15, {sp(S_DBG)} sc1")
A("s_barrier")
if EXP:
    A(f"v_mov_b32 {vr(T+4)}, {L_REL}")
    A(f"v_mov_b32 {vr(T+5)}, 1")
    A(f"ds_write_b32 {vr(T+4)}, {vr(T+5)}")
    A("s_waitcnt vmcnt(0)")
    stamp(1)
    stamp_flush(11, 0, T+8, T+9)
    A("s_endpgm")
A(f"v_mov_b32 {vr(T+6)}, v15")
A("v_lshrrev_b32 v3, 4, v0")
A("v_and_b32 v4, 15, v0")
A("v_lshrrev_b32 v4, 2, v4")
A("v_lshlrev_b32 v15, 3, v3")
A("v_add_u32 v15, v15, v4")
vWQA, vW1A, vXNW, vXNR = T+10, T+11, T+12, T+13
A(f"v_lshlrev_b32 {vr(vWQA)}, 5, v15")
A("v_and_b32 v4, 3, v0")
A("v_lshlrev_b32 v4, 3, v4")
A(f"v_add_u32 {vr(vWQA)}, {vr(vWQA)}, v4")
A(f"v_add_u32 {vr(vWQA)}, {L_WQ}, {vr(vWQA)}")
A(f"v_lshlrev_b32 {vr(vW1A)}, 4, v15")
A("v_and_b32 v4, 1, v0")
A("v_lshlrev_b32 v4, 3, v4")
A(f"v_add_u32 {vr(vW1A)}, {vr(vW1A)}, v4")
A(f"v_add_u32 {vr(vW1A)}, {L_W1}, {vr(vW1A)}")
A(f"v_add_u32 {vr(vXNW)}, {L_XN}, v5")
A(f"v_lshlrev_b32 {vr(vXNR)}, 4, v3")
A(f"v_add_u32 {vr(vXNR)}, {L_XN}, {vr(vXNR)}")
A(f"v_mov_b32 v15, {vr(T+6)}")
A("s_branch L_nonce_nos")
LBL("L_nonce")
A(f"global_load_dwordx2 {vr(T+2,2)}, v15, {sp(S_DBG)} sc1")
A(f"s_cmp_lt_u32 s{sSPIN}, {TMO}")
A("s_cbranch_scc1 L_nonce_nos")
A(f"global_load_dwordx2 {vr(T+4,2)}, v15, {sp(S_DBG)} offset:128 sc1")
LBL("L_nonce_nos")
spin_check()
A("s_waitcnt vmcnt(0)")
A(f"v_or_b32 {vr(T+2)}, {vr(T+2)}, {vr(T+4)}")
A(f"v_or_b32 {vr(T+3)}, {vr(T+3)}, {vr(T+5)}")
A("s_nop 0")
A(f"v_readfirstlane_b32 s{sNL}, {vr(T+2)}")
A(f"v_readfirstlane_b32 s{sNH}, {vr(T+3)}")
A("s_nop 1")
A(f"s_cmp_lt_i32 s{sNH}, 0")
A("s_cbranch_scc0 L_nonce")
stamp(1)
A(f"v_mov_b32 {vr(T+4)}, {L_NONCE}")
A(f"ds_write_b64 {vr(T+4)}, {vr(T+2,2)}")


def load_bfrags(addr, kstep, hstep):
    for kk in range(14):
        for hh in range(2):
            A(f"ds_read_b64_tr_b16 {vr(BF+4*kk+2*hh,2)}, {vr(addr)} offset:{kk*kstep+hh*hstep}")


load_bfrags(vWQA, 1024, 128)
for i in range(4):
    A(f"v_lshlrev_b32 {vr(X+2*i)}, 16, {vr(AF+i)}")
    A(f"v_and_b32 {vr(X+2*i+1)}, 0xffff0000, {vr(AF+i)}")
for i in range(2):
    A(f"v_lshlrev_b32 {vr(XO+2*i)}, 16, {vr(T+i)}")
    A(f"v_and_b32 {vr(XO+2*i+1)}, 0xffff0000, {vr(T+i)}")
A(f"v_and_b32 {vr(B2O+3)}, 0xffff0000, {vr(B2O+1)}")
A(f"v_lshlrev_b32 {vr(B2O+2)}, 16, {vr(B2O+1)}")
A(f"v_and_b32 {vr(B2O+1)}, 0xffff0000, {vr(B2O)}")
A(f"v_lshlrev_b32 {vr(B2O)}, 16, {vr(B2O)}")
A(f"v_lshlrev_b32 {vr(B1)}, 16, {vr(B1)}")


def layernorm(xin, xout, pk, t):
    s1, s2, a, b = t, t+1, t+2, t+3
    A(f"v_add_f32 {vr(s1)}, {vr(xin)}, {vr(xin+1)}")
    A(f"v_mul_f32 {vr(s2)}, {vr(xin)}, {vr(xin)}")
    A(f"v_fmac_f32 {vr(s2)}, {vr(xin+1)}, {vr(xin+1)}")
    for i in range(2, 8):
        A(f"v_add_f32 {vr(s1)}, {vr(s1)}, {vr(xin+i)}")
        A(f"v_fmac_f32 {vr(s2)}, {vr(xin+i)}, {vr(xin+i)}")
    allreduce("v_add_f32", [s1, s2], [a, b], [8, 4, 2, 1])
    A(f"v_mul_f32 {vr(s1)}, 0x3b124925, {vr(s1)}")
    A(f"v_mul_f32 {vr(s2)}, 0x3b124925, {vr(s2)}")
    A(f"v_fma_f32 {vr(s2)}, -{vr(s1)}, {vr(s1)}, {vr(s2)}")
    A(f"v_max_f32 {vr(s2)}, 0, {vr(s2)}")
    A(f"v_cvt_pk_bf16_f32 {vr(a)}, {vr(s1)}, {vr(s2)}")
    A(f"v_lshlrev_b32 {vr(s1)}, 16, {vr(a)}")
    A(f"v_and_b32 {vr(s2)}, 0xffff0000, {vr(a)}")
    A(f"v_add_f32 {vr(s2)}, 0x3727c5ac, {vr(s2)}")
    A(f"v_cvt_pk_bf16_f32 {vr(a)}, {vr(s2)}, {vr(s2)}")
    A(f"v_lshlrev_b32 {vr(s2)}, 16, {vr(a)}")
    A(f"v_sqrt_f32 {vr(s2)}, {vr(s2)}")
    nop(1)
    A(f"v_cvt_pk_bf16_f32 {vr(a)}, {vr(s2)}, {vr(s2)}")
    A(f"v_lshlrev_b32 {vr(s2)}, 16, {vr(a)}")
    A(f"v_rcp_f32 {vr(b)}, {vr(s2)}")
    d0, d1, q0, q1 = t+4, t+5, t+6, t+7
    for i in range(4):
        A(f"v_sub_f32 {vr(d0)}, {vr(xin+2*i)}, {vr(s1)}")
        A(f"v_sub_f32 {vr(d1)}, {vr(xin+2*i+1)}, {vr(s1)}")
        A(f"v_cvt_pk_bf16_f32 {vr(a)}, {vr(d0)}, {vr(d1)}")
        A(f"v_lshlrev_b32 {vr(d0)}, 16, {vr(a)}")
        A(f"v_and_b32 {vr(d1)}, 0xffff0000, {vr(a)}")
        A(f"v_mul_f32 {vr(q0)}, {vr(d0)}, {vr(b)}")
        A(f"v_mul_f32 {vr(q1)}, {vr(d1)}, {vr(b)}")
        A(f"v_fma_f32 {vr(d0)}, -{vr(q0)}, {vr(s2)}, {vr(d0)}")
        A(f"v_fma_f32 {vr(d1)}, -{vr(q1)}, {vr(s2)}, {vr(d1)}")
        A(f"v_fmac_f32 {vr(q0)}, {vr(d0)}, {vr(b)}")
        A(f"v_fmac_f32 {vr(q1)}, {vr(d1)}, {vr(b)}")
        A(f"v_cvt_pk_bf16_f32 {vr(pk+i)}, {vr(q0)}, {vr(q1)}")
        if xout is not None:
            A(f"v_lshlrev_b32 {vr(xout+2*i)}, 16, {vr(pk+i)}")
            A(f"v_and_b32 {vr(xout+2*i+1)}, 0xffff0000, {vr(pk+i)}")


def matvec(pk, acc):
    A(f"s_mov_b64 exec, {sp(sM56)}")
    A(f"ds_write_b128 {vr(vXNW)}, {vr(pk,4)}")
    A("s_mov_b64 exec, -1")
    A("s_waitcnt lgkmcnt(0)")
    for kk in range(14):
        A(f"ds_read_b128 {vr(AF+4*kk,4)}, {vr(vXNR)} offset:{64*kk}")
    for kk in range(14):
        if kk % 2 == 0:
            A(f"s_waitcnt lgkmcnt({max(0, 12-kk)})")
        c = "0" if kk == 0 else vr(acc, 4)
        A(f"v_mfma_f32_16x16x32_bf16 {vr(acc,4)}, {vr(AF+4*kk,4)}, {vr(BF+4*kk,4)}, {c}")
    nop(9)


PK = T
ACC = T+4
LNT = AF
H = AF+16
G = AF+24


def own_record(wsbase, pol):
    A(f"s_or_b32 s{sT2}, s{sNL}, s{sXCC}")
    A(f"v_mov_b32 {vr(H+4)}, s{sT2}")
    A(f"v_mov_b32 {vr(H+5)}, s{sNH}")
    A(f"s_lshl_b32 s{sT2}, s{sG}, 8")
    A(f"s_lshl_b32 s{sT3}, s{sJ}, 3")
    A(f"s_add_u32 s{sT2}, s{sT2}, s{sT3}")
    A(f"s_add_u32 s{sT2}, s{sT2}, {wsbase}")
    A(f"v_mov_b32 {vr(H+7)}, s{sT2}")
    A("s_mov_b64 exec, 1")
    A(f"global_store_dwordx2 {vr(H+7)}, {vr(H+4,2)}, {sp(S_WS)} {pol}")
    A("s_mov_b64 exec, -1")


def q1_store(pol):
    A(f"s_mov_b64 exec, {sp(sM16)}")
    A(f"global_store_dwordx2 {vr(G+2)}, {vr(G,2)}, {sp(S_WS)} {pol}")
    A("s_mov_b64 exec, -1")


LBL("L_ctrl_layer")
A("s_waitcnt lgkmcnt(0)")
layernorm(X, None, PK, LNT)
matvec(PK, ACC)
A(f"v_cvt_pk_bf16_f32 {vr(ACC)}, {vr(ACC)}, {vr(ACC)}")
A(f"v_lshlrev_b32 {vr(ACC)}, 16, {vr(ACC)}")
stamp(2)
A(f"s_cmp_lg_u32 s{sLAYER}, 0")
A("s_cbranch_scc1 L_ctrl_pubq")
A(f"s_and_b32 s{sC1}, s{sNH}, 0xffff")
A(f"v_or_b32 {vr(G)}, s{sC1}, {vr(ACC)}")
A(f"v_mov_b32 {vr(G+1)}, s{sNL}")
A(f"s_lshl_b32 s{sT2}, s{sG}, 12")
A(f"s_add_u32 s{sT2}, s{sT2}, {WS_Q1}")
A(f"s_lshl_b32 s{sT3}, s{sJ}, 7")
A(f"s_add_u32 s{sT3}, s{sT3}, s{sT2}")
A(f"v_lshlrev_b32 {vr(G+2)}, 3, v0")
A(f"v_add_u32 {vr(G+2)}, s{sT3}, {vr(G+2)}")
A(f"v_lshlrev_b32 {vr(H+3)}, 6, v0")
A(f"v_add_u32 {vr(H+3)}, s{sT2}, {vr(H+3)}")
q1_store("")
own_record(WS_HF, "")
A(f"s_mov_b32 s{sSPIN}, 0")
LBL("L_q1")
for i in range(4):
    A(f"global_load_dwordx4 {vr(AF+4*i,4)}, {vr(H+3)}, {sp(S_WS)} offset:{16*i} sc1")
spin_check()
A(f"s_cmp_lg_u32 s{sSPIN}, {TMO}")
A("s_cbranch_scc1 L_q1_nos")
q1_store("sc1")
own_record(WS_HS, "sc1")
LBL("L_q1_nos")
A("s_waitcnt vmcnt(0)")
A(f"v_xor_b32 {vr(H+4)}, s{sNL}, {vr(AF+1)}")
for i in range(1, 8):
    A(f"v_xor_b32 {vr(H+5)}, s{sNL}, {vr(AF+2*i+1)}")
    A(f"v_or_b32 {vr(H+4)}, {vr(H+4)}, {vr(H+5)}")
for i in range(8):
    A(f"v_xor_b32 {vr(H+5)}, s{sC1}, {vr(AF+2*i)}")
    A(f"v_and_b32 {vr(H+5)}, 0xffff, {vr(H+5)}")
    A(f"v_or_b32 {vr(H+4)}, {vr(H+4)}, {vr(H+5)}")
A(f"v_cmp_eq_u32 vcc, 0, {vr(H+4)}")
A("s_nop 1")
A("s_cmp_eq_u64 vcc, exec")
A("s_cbranch_scc0 L_q1")
for i in range(1, 8):
    A(f"v_mov_b32 {vr(AF+i)}, {vr(AF+2*i)}")
A(f"v_mov_b32 {vr(H)}, {L_REL}")
A(f"v_mov_b32 {vr(H+1)}, 1")
A(f"ds_write_b32 {vr(H)}, {vr(H+1)}")
A("s_branch L_ctrl_gotq")
LBL("L_ctrl_pubq")
A(f"v_or_b32 {vr(ACC)}, s{sTAG}, {vr(ACC)}")
A(f"v_mul_u32_u24 {vr(T+8)}, 12, v0")
A(f"v_sub_u32 {vr(T+8)}, v9, {vr(T+8)}")
A(f"s_lshl_b32 s{sT2}, s{sG}, 11")
A(f"v_lshlrev_b32 {vr(T+9)}, 5, v0")
A(f"v_add_u32 {vr(T+9)}, s{sT2}, {vr(T+9)}")
A(f"s_mov_b64 exec, {sp(sM16)}")
st_local([f"global_store_dword {vr(T+8)}, {vr(ACC)}, {sp(S_WS)}"])
A("s_mov_b64 exec, -1")
poll([f"global_load_dwordx4 {vr(AF,4)}, {vr(T+9)}, {sp(S_WS)}",
      f"global_load_dwordx4 {vr(AF+4,4)}, {vr(T+9)}, {sp(S_WS)} offset:16"],
     list(range(AF, AF+8)), T+8)
LBL("L_ctrl_gotq")
A(f"s_mov_b32 s{sC3}, 0x07060302")
for i in range(4):
    A(f"v_perm_b32 {vr(AF+8+i)}, {vr(AF+2*i+1)}, {vr(AF+2*i)}, s{sC3}")
A(f"v_add_u32 v15, {L_Q}, v5")
A(f"ds_write_b128 v15, {vr(AF+8,4)}")
A("s_waitcnt lgkmcnt(0)")
stamp(3)
A("s_barrier")
A(f"s_cmp_eq_u32 s{sLAYER}, 0")
A("s_cbranch_scc1 L_ctrl_b1")
load_bfrags(vW1A, 512, 64)
A("s_barrier")
A("s_waitcnt lgkmcnt(0)")
A("s_barrier")
A("s_branch L_ctrl_l2")
LBL("L_ctrl_b1")
A("s_barrier")
A(f"s_lshl_b32 s{sT2}, s{sG}, 8")
A(f"s_add_u32 s{sT2}, s{sT2}, {WS_HF}")
A("v_and_b32 v15, 31, v0")
A("v_lshlrev_b32 v15, 3, v15")
A(f"v_add_u32 v15, s{sT2}, v15")
A(f"v_add_u32 {vr(AF+14)}, {WS_HS-WS_HF}, v15")
A(f"s_mov_b32 s{sSPIN}, 0")
A(f"s_mov_b32 s{sC1}, 0")
A(f"v_mov_b32 {vr(H+2)}, 0")
A(f"v_mov_b32 {vr(H+3)}, 0")
LBL("L_hello")
A(f"global_load_dwordx2 {vr(H,2)}, v15, {sp(S_WS)} sc1")
A(f"s_cmp_eq_u32 s{sC1}, 0")
A("s_cbranch_scc1 L_hello_nos")
A(f"global_load_dwordx2 {vr(H+2,2)}, {vr(AF+14)}, {sp(S_WS)} sc1")
LBL("L_hello_nos")
spin_check()
A("s_waitcnt vmcnt(0)")
A(f"v_and_b32 {vr(H+4)}, -16, {vr(H)}")
A(f"v_xor_b32 {vr(H+4)}, s{sNL}, {vr(H+4)}")
A(f"v_xor_b32 {vr(H+5)}, s{sNH}, {vr(H+1)}")
A(f"v_or_b32 {vr(H+4)}, {vr(H+4)}, {vr(H+5)}")
A(f"v_cmp_eq_u32 {sp(sT0)}, 0, {vr(H+4)}")
A(f"v_and_b32 {vr(H+4)}, -16, {vr(H+2)}")
A(f"v_xor_b32 {vr(H+4)}, s{sNL}, {vr(H+4)}")
A(f"v_xor_b32 {vr(H+5)}, s{sNH}, {vr(H+3)}")
A(f"v_or_b32 {vr(H+4)}, {vr(H+4)}, {vr(H+5)}")
A(f"v_cmp_eq_u32 vcc, 0, {vr(H+4)}")
A("s_nop 1")
A(f"v_cndmask_b32 {vr(H)}, {vr(H+2)}, {vr(H)}, {sp(sT0)}")
A(f"s_or_b64 {sp(sT0)}, {sp(sT0)}, vcc")
A(f"v_and_b32 {vr(H)}, 15, {vr(H)}")
A(f"v_cmp_ne_u32 vcc, s{sXCC}, {vr(H)}")
A("s_nop 1")
A(f"s_and_b64 vcc, vcc, {sp(sT0)}")
A("s_cmp_lg_u64 vcc, 0")
A("s_cbranch_scc1 L_slow")
A(f"s_cmp_eq_u64 {sp(sT0)}, exec")
A("s_cbranch_scc1 L_fast")
A(f"s_cmp_lt_u32 s{sSPIN}, {TMO}")
A("s_cbranch_scc1 L_hello")
A(f"s_cmp_lg_u32 s{sC1}, 0")
A("s_cbranch_scc1 L_hello")
A(f"s_mov_b32 s{sC1}, 1")
q1_store("sc1")
own_record(WS_HS, "sc1")
A("s_branch L_hello")
LBL("L_slow")
q1_store("sc1")
own_record(WS_HS, "sc1")
for i in range(4):
    A(f"v_mov_b32 {vr(AF+8+i)}, 0")
local_clears("sc1", AF+8)
A("s_waitcnt vmcnt(0)")
own_record(WS_HZ, "sc1")
A(f"v_add_u32 {vr(AF+14)}, {WS_HZ-WS_HF}, v15")
A(f"s_mov_b32 s{sSPIN}, 0")
LBL("L_hello2")
A(f"global_load_dwordx2 {vr(H,2)}, {vr(AF+14)}, {sp(S_WS)} sc1")
spin_check()
A("s_waitcnt vmcnt(0)")
A(f"v_and_b32 {vr(H+4)}, -16, {vr(H)}")
A(f"v_xor_b32 {vr(H+4)}, s{sNL}, {vr(H+4)}")
A(f"v_xor_b32 {vr(H+5)}, s{sNH}, {vr(H+1)}")
A(f"v_or_b32 {vr(H+4)}, {vr(H+4)}, {vr(H+5)}")
A(f"v_cmp_eq_u32 vcc, 0, {vr(H+4)}")
A("s_nop 1")
A("s_cmp_eq_u64 vcc, exec")
A("s_cbranch_scc0 L_hello2")
A(f"s_mov_b32 s{sMODE}, 0")
A("s_branch L_modew")
LBL("L_fast")
A(f"s_mov_b32 s{sMODE}, 1")
LBL("L_modew")
A(f"v_mov_b32 {vr(H)}, {L_MODE}")
A(f"v_mov_b32 {vr(H+1)}, s{sMODE}")
A(f"ds_write_b32 {vr(H)}, {vr(H+1)}")
A("s_waitcnt lgkmcnt(0)")
A("s_barrier")
A("s_barrier")
A(f"v_add_u32 v15, 65536, v5")
for r in range(16):
    base = "v5" if (r % 4) < 2 else "v15"
    A(f"ds_read_b128 {vr(WO+4*r,4)}, {base} offset:{(r%2)*32768 + (r//4)*1024}")
for r in range(8):
    base = "v5" if (r % 4) < 2 else "v15"
    A(f"ds_read_b128 {vr(W2+4*r,4)}, {base} offset:{(r%2)*32768 + (4 + r//4)*1024}")
A("s_waitcnt lgkmcnt(0)")
A(f"s_mov_b32 s{sC1}, 0x05040100")
A(f"s_mov_b32 s{sC3}, 0x07060302")
for base, npairs in ((WO, 8), (W2, 4)):
    for p in range(npairs):
        for k in range(4):
            ra = base + 8*p + k
            rb = base + 8*p + 4 + k
            A(f"v_perm_b32 {vr(T+8)}, {vr(rb)}, {vr(ra)}, s{sC1}")
            A(f"v_perm_b32 {vr(rb)}, {vr(rb)}, {vr(ra)}, s{sC3}")
            A(f"v_mov_b32 {vr(ra)}, {vr(T+8)}")
load_bfrags(vW1A, 512, 64)
LBL("L_ctrl_l2")
stamp(4)
A("v_lshrrev_b32 v15, 2, v0")
A("v_lshlrev_b32 v15, 3, v15")
A("v_sub_u32 v15, v15, v5")
A("v_add_u32 v15, v15, v6")
OB = AF
oa, ob, mla, mlb = AF, AF+8, AF+12, AF+14
poll([f"global_load_dwordx4 {vr(oa,4)}, v6, {sp(S_WS)}",
      f"global_load_dwordx4 {vr(ob,4)}, v6, {sp(S_WS)} offset:1024",
      f"global_load_dwordx2 {vr(mla,2)}, v15, {sp(S_WS)} offset:2048",
      f"global_load_dwordx2 {vr(mlb,2)}, v15, {sp(S_WS)} offset:2176"],
     [oa, ob, mla, mlb], T+8)
stamp(5)
mx, wa, wb, ls = AF+16, AF+17, AF+18, AF+19
A(f"v_max_f32 {vr(mx)}, {vr(mla)}, {vr(mlb)}")
allreduce("v_max_f32", [mx], [AF+20], [4, 8])
A(f"v_sub_f32 {vr(wa)}, {vr(mla)}, {vr(mx)}")
A(f"v_sub_f32 {vr(wb)}, {vr(mlb)}, {vr(mx)}")
A(f"v_mul_f32 {vr(wa)}, s{sC0}, {vr(wa)}")
A(f"v_mul_f32 {vr(wb)}, s{sC0}, {vr(wb)}")
A(f"v_exp_f32 {vr(wa)}, {vr(wa)}")
A(f"v_exp_f32 {vr(wb)}, {vr(wb)}")
nop(1)
A(f"v_mul_f32 {vr(ls)}, {vr(wa)}, {vr(mla+1)}")
A(f"v_fmac_f32 {vr(ls)}, {vr(wb)}, {vr(mlb+1)}")
for i in range(4):
    A(f"v_mul_f32 {vr(oa+i)}, {vr(wa)}, {vr(oa+i)}")
    A(f"v_fmac_f32 {vr(oa+i)}, {vr(wb)}, {vr(ob+i)}")
allreduce("v_add_f32", [ls, oa, oa+1, oa+2, oa+3], list(range(AF+20, AF+25)), [4, 8])
A(f"v_rcp_f32 {vr(ls)}, {vr(ls)}")
nop(1)
for i in range(4):
    A(f"v_mul_f32 {vr(oa+i)}, {vr(oa+i)}, {vr(ls)}")
A(f"v_cvt_pk_bf16_f32 {vr(OB+4)}, {vr(oa)}, {vr(oa+1)}")
A(f"v_cvt_pk_bf16_f32 {vr(OB+5)}, {vr(oa+2)}, {vr(oa+3)}")
dump([OB+4, OB+5], 0, 15)
nop(1)
for qq in range(4):
    for p in range(2):
        A(f"v_readlane_b32 s{sPK+2*qq+p}, {vr(OB+4+p)}, {qq}")
nop(2)
PA = AF+24


def dotpartial(base, npairs):
    for p in range(npairs):
        for c in range(8):
            w = base + 8*p + (c >> 1) + 4*(c & 1)
            if p == 0:
                A(f"v_dot2_f32_bf16 {vr(PA+c)}, s{sPK+p}, {vr(w)}, 0")
            else:
                A(f"v_dot2_f32_bf16 {vr(PA+c)}, s{sPK+p}, {vr(w)}, {vr(PA+c)}")
    nop(3)
    for c in (0, 4):
        A(f"v_bfi_b32 {vr(PA+c)}, 3, s{sTAG}, {vr(PA+c)}")


def publish_rs(wsbase):
    A(f"s_lshl_b32 s{sT2}, s{sG}, 16")
    A(f"s_lshl_b32 s{sT3}, s{sJ}, 6")
    A(f"s_add_u32 s{sT2}, s{sT2}, s{sT3}")
    A(f"s_add_u32 s{sT2}, s{sT2}, {wsbase}")
    A("v_lshrrev_b32 v15, 1, v0")
    A("v_lshlrev_b32 v15, 11, v15")
    A(f"v_and_b32 {vr(T+8)}, 1, v0")
    A(f"v_lshlrev_b32 {vr(T+8)}, 5, {vr(T+8)}")
    A(f"v_add3_u32 v15, v15, {vr(T+8)}, s{sT2}")
    A(f"s_mov_b64 exec, {sp(sM56)}")
    st_local([f"global_store_dwordx4 v15, {vr(PA,4)}, {sp(S_WS)}",
              f"global_store_dwordx4 v15, {vr(PA+4,4)}, {sp(S_WS)} offset:16"])
    A("s_mov_b64 exec, -1")


dotpartial(WO, 8)
publish_rs(WS_RS1)
stamp(6)
A(f"s_cmp_ge_u32 s{sJ}, 28")
A("s_cbranch_scc1 L_ctrl_skipmlp")


def xr_check():
    A(f"s_cmp_lg_u32 s{sLAYER}, 0")
    A("s_cbranch_scc1 L_xr_ok")
    A("v_lshlrev_b32 v15, 4, v0")
    A(f"s_lshl_b32 s{sT2}, s{sJ}, 6")
    A(f"s_add_u32 s{sT2}, s{sT2}, {WS_XR}")
    A(f"v_lshlrev_b32 {vr(AF+18)}, 3, v0")
    A(f"v_add_u32 {vr(AF+18)}, s{sT2}, {vr(AF+18)}")
    A(f"s_mov_b64 exec, {sp(sM8)}")
    A(f"s_mov_b32 s{sSPIN}, 0")
    LBL("L_xr")
    A(f"global_load_dwordx2 {vr(AF+12,2)}, v15, {sp(S_DBG)} offset:128 sc1")
    A(f"global_load_dwordx2 {vr(AF+14,2)}, {vr(AF+18)}, {sp(S_WS)} sc1")
    spin_check()
    A("s_waitcnt vmcnt(0)")
    A(f"v_xor_b32 {vr(AF+16)}, {vr(AF+12)}, {vr(AF+14)}")
    A(f"v_xor_b32 {vr(AF+17)}, {vr(AF+13)}, {vr(AF+15)}")
    A(f"v_or_b32 {vr(AF+16)}, {vr(AF+16)}, {vr(AF+17)}")
    A(f"v_cmp_eq_u32 {sp(sT0)}, 0, {vr(AF+16)}")
    A(f"v_cmp_gt_i32 vcc, 0, {vr(AF+13)}")
    A("s_nop 1")
    A(f"s_and_b64 vcc, vcc, {sp(sT0)}")
    A("s_cmp_eq_u64 vcc, exec")
    A("s_cbranch_scc0 L_xr")
    A("s_mov_b64 exec, -1")
    LBL("L_xr_ok")


def reduce_stage(vinbox, vxs, nprod, wsxs):
    a, b = AF, AF+4
    if nprod == 32:
        poll([f"global_load_dwordx4 {vr(a,4)}, v{vinbox}, {sp(S_WS)}",
              f"global_load_dwordx4 {vr(b,4)}, v{vinbox}, {sp(S_WS)} offset:1024"],
             [a, b], T+8)
    else:
        A(f"v_mov_b32 {vr(b)}, s{sTAG}")
        for i in range(1, 4):
            A(f"v_mov_b32 {vr(b+i)}, 0")
        poll([f"global_load_dwordx4 {vr(a,4)}, v{vinbox}, {sp(S_WS)}",
              "!s_mov_b32 exec_hi, 0xffff",
              f"global_load_dwordx4 {vr(b,4)}, v{vinbox}, {sp(S_WS)} offset:1024",
              "!s_mov_b64 exec, -1"],
             [a, b], T+8)
    for i in range(4):
        A(f"v_add_f32 {vr(a+i)}, {vr(a+i)}, {vr(b+i)}")
    allreduce("v_add_f32", [a, a+1, a+2, a+3], list(range(AF+8, AF+12)), [4, 8])
    A(f"v_bfi_b32 {vr(a)}, 3, s{sTAG}, {vr(a)}")
    A(f"s_mov_b64 exec, {sp(sM4)}")
    A(f"global_store_dwordx4 v{vxs}, {vr(a,4)}, {sp(S_WS)} sc1")
    A("s_mov_b64 exec, -1")
    if nprod == 32:
        xr_check()
    A(f"s_lshl_b32 s{sT2}, s{sJ}, 9")
    A(f"s_add_u32 s{sT2}, s{sT2}, {wsxs}")
    A(f"v_add_u32 v15, s{sT2}, v5")
    for i in range(4):
        A(f"v_mov_b32 {vr(b+i)}, 0")
    A(f"s_mov_b64 exec, {sp(sM32)}")
    sets = [AF+40+4*k for k in range(NP)]
    l = newlab("xs")
    de = newlab("xse")
    dl = [newlab("xsd") for _ in sets]
    A(f"s_mov_b32 s{sSPIN}, 0")
    for q in sets:
        A(f"global_load_dwordx4 {vr(q,4)}, v15, {sp(S_WS)} sc1")
    LBL(l)
    spin_check()
    for q, d in zip(sets, dl):
        A(f"s_waitcnt vmcnt({NP-1})")
        A(f"v_and_b32 {vr(T+8)}, s{sTAG}, {vr(q)}")
        A(f"v_cmp_ne_u32 vcc, 0, {vr(T+8)}")
        A("s_nop 1")
        A("s_cmp_eq_u64 vcc, exec")
        A(f"s_cbranch_scc1 {d}")
        A(f"global_load_dwordx4 {vr(q,4)}, v15, {sp(S_WS)} sc1")
    A(f"s_branch {l}")
    for q, d in zip(sets, dl):
        LBL(d)
        for i in range(4):
            A(f"v_mov_b32 {vr(b+i)}, {vr(q+i)}")
        A(f"s_branch {de}")
    LBL(de)
    A("s_mov_b64 exec, -1")
    allreduce("v_add_f32", [b, b+1, b+2, b+3], list(range(AF+8, AF+12)), [4, 8], swap16=True, swap32=False)
    return b


def bf16round(regs, tmp):
    for i in range(0, len(regs), 2):
        A(f"v_cvt_pk_bf16_f32 {vr(tmp)}, {vr(regs[i])}, {vr(regs[i+1])}")
        A(f"v_lshlrev_b32 {vr(regs[i])}, 16, {vr(tmp)}")
        A(f"v_and_b32 {vr(regs[i+1])}, 0xffff0000, {vr(tmp)}")


def gather_x(wsxg):
    A(f"s_lshl_b32 s{sT2}, s{sG}, 11")
    A(f"s_add_u32 s{sT2}, s{sT2}, {wsxg}")
    A("v_lshlrev_b32 v15, 5, v0")
    A(f"v_add_u32 v15, s{sT2}, v15")
    A(f"s_mov_b64 exec, {sp(sM56)}")
    poll([f"global_load_dwordx4 {vr(X,4)}, v15, {sp(S_WS)}",
          f"global_load_dwordx4 {vr(X+4,4)}, v15, {sp(S_WS)} offset:16"],
         [X, X+4], T+8)
    for i in (0, 4):
        A(f"v_and_b32 {vr(X+i)}, 0xffff0000, {vr(X+i)}")
    A("s_mov_b64 exec, -1")


r = reduce_stage(7, 12, 32, WS_XS1)
bf16round([r, r+1, r+2, r+3], T+8)
for i in range(4):
    A(f"v_add_f32 {vr(XO+i)}, {vr(XO+i)}, {vr(r+i)}")
bf16round([XO, XO+1, XO+2, XO+3], T+8)
A(f"v_or_b32 {vr(r)}, s{sTAG}, {vr(XO)}")
for i in range(1, 4):
    A(f"v_mov_b32 {vr(r+i)}, {vr(XO+i)}")
A(f"s_mov_b64 exec, {sp(sM4)}")
st_local([f"global_store_dwordx4 v10, {vr(r,4)}, {sp(S_WS)}"])
A("s_mov_b64 exec, -1")
stamp(7)
gather_x(WS_XG1)
dump(list(range(X, X+8)), 2, 15)
Y = AF+16
layernorm(X, Y, PK, LNT)
A(f"s_mov_b64 exec, {sp(sM56)}")
A("s_not_b64 exec, exec")
for i in range(8):
    A(f"v_mov_b32 {vr(Y+i)}, 0")
A("s_mov_b64 exec, -1")
layernorm(Y, None, PK, LNT)
matvec(PK, ACC)
h = ACC
A(f"v_cvt_pk_bf16_f32 {vr(h)}, {vr(h)}, {vr(h)}")
A(f"v_lshlrev_b32 {vr(h)}, 16, {vr(h)}")
A(f"v_add_f32 {vr(h)}, {vr(h)}, {vr(B1)}")
A(f"v_cvt_pk_bf16_f32 {vr(h)}, {vr(h)}, {vr(h)}")
A(f"v_lshlrev_b32 {vr(h)}, 16, {vr(h)}")
A(f"v_mul_f32 {vr(h+1)}, {vr(h)}, {vr(h)}")
A(f"v_mul_f32 {vr(h+1)}, {vr(h+1)}, {vr(h)}")
A(f"v_mov_b32 {vr(h+2)}, {vr(h)}")
A(f"v_fmac_f32 {vr(h+2)}, 0x3d372713, {vr(h+1)}")
A(f"v_mul_f32 {vr(h+2)}, 0x40135761, {vr(h+2)}")
A(f"v_exp_f32 {vr(h+2)}, {vr(h+2)}")
nop(1)
A(f"v_add_f32 {vr(h+2)}, 1.0, {vr(h+2)}")
A(f"v_rcp_f32 {vr(h+2)}, {vr(h+2)}")
nop(1)
A(f"v_sub_f32 {vr(h+2)}, 1.0, {vr(h+2)}")
A(f"v_mul_f32 {vr(h)}, {vr(h)}, {vr(h+2)}")
A(f"v_cvt_pk_bf16_f32 {vr(h)}, {vr(h)}, {vr(h)}")
dump([h], 12, 15)
nop(1)
for p in range(4):
    A(f"v_readlane_b32 s{sRL}, {vr(h)}, {2*p}")
    A(f"v_readlane_b32 s{sRL+1}, {vr(h)}, {2*p+1}")
    nop(1)
    A(f"s_pack_ll_b32_b16 s{sPK+p}, s{sRL}, s{sRL+1}")
nop(2)
dotpartial(W2, 4)
publish_rs(WS_RS2)
stamp(8)
r = reduce_stage(8, 13, 28, WS_XS2)
bf16round([r, r+1, r+2, r+3], T+8)
for i in range(4):
    A(f"v_add_f32 {vr(r+i)}, {vr(r+i)}, {vr(B2O+i)}")
bf16round([r, r+1, r+2, r+3], T+8)
for i in range(4):
    A(f"v_add_f32 {vr(XO+i)}, {vr(XO+i)}, {vr(r+i)}")
bf16round([XO, XO+1, XO+2, XO+3], T+8)
A(f"s_cmp_lg_u32 s{sLAYER}, 0")
A("s_cbranch_scc1 L_ctrl_final")
A(f"v_or_b32 {vr(r)}, s{sTAG}, {vr(XO)}")
for i in range(1, 4):
    A(f"v_mov_b32 {vr(r+i)}, {vr(XO+i)}")
A(f"s_mov_b64 exec, {sp(sM4)}")
st_local([f"global_store_dwordx4 v11, {vr(r,4)}, {sp(S_WS)}"])
A("s_mov_b64 exec, -1")
LBL("L_ctrl_skipmlp")
A(f"s_cmp_lg_u32 s{sLAYER}, 0")
A("s_cbranch_scc1 L_ctrl_done")
stamp(9)
load_bfrags(vWQA, 1024, 128)
gather_x(WS_XG2)
dump(list(range(X, X+8)), 14, 15)
stamp(10)
stamp_flush(11, 0, T+8, T+9)
A(f"s_mov_b32 s{sLAYER}, 1")
A(f"s_mov_b32 s{sTAG}, 2")
A("s_branch L_ctrl_layer")

LBL("L_ctrl_final")
A(f"s_cmp_lg_u32 s{sG}, 0")
A("s_cbranch_scc1 L_ctrl_done")
A(f"v_cvt_pk_bf16_f32 {vr(T)}, {vr(XO)}, {vr(XO+1)}")
A(f"v_cvt_pk_bf16_f32 {vr(T+1)}, {vr(XO+2)}, {vr(XO+3)}")
A(f"s_mov_b64 exec, {sp(sM4)}")
A(f"global_store_dwordx2 v14, {vr(T,2)}, {sp(S_OUT)}")
A("s_mov_b64 exec, -1")
LBL("L_ctrl_done")
stamp(9)
stamp_flush(11, 16, T+8, T+9)
LBL("L_abort")
LBL("L_end")
A("s_endpgm")

lines.append('.section .rodata,"a"')
lines.append(".p2align 6")
lines.append(f".amdhsa_kernel {NAME}_kernel")
lines.append("  .amdhsa_next_free_vgpr 256")
lines.append("  .amdhsa_next_free_sgpr 102")
lines.append("  .amdhsa_accum_offset 256")
lines.append("  .amdhsa_group_segment_fixed_size 0")
lines.append("  .amdhsa_kernarg_size 104")
lines.append("  .amdhsa_user_sgpr_count 2")
lines.append("  .amdhsa_user_sgpr_kernarg_segment_ptr 1")
lines.append("  .amdhsa_system_sgpr_workgroup_id_x 1")
lines.append(".end_amdhsa_kernel")
open(OUT, "w").write("\n".join(lines) + "\n")
print("wrote", OUT, len(lines), "lines")
```

```python
import sys
import os

NAME = "interleave_layers__sliding_block_cached__mixer_channel_mlp__decode"
DEBUG = int(sys.argv[1]) if len(sys.argv) > 1 else 0
STAMP = int(sys.argv[2]) if len(sys.argv) > 2 else 0
OUT = sys.argv[3] if len(sys.argv) > 3 else f"cdna_kernels/{NAME}.s"
KVPOL = os.environ.get("KVPOL", "nt")
W2POL = os.environ.get("W2POL", "nt")
WPOL = os.environ.get("WPOL", "")
WIN = int(os.environ.get("WIN", "6"))
TOUCH = int(os.environ.get("TOUCH", "1"))
EXP = int(os.environ.get("EXP", "0"))
BK = int(os.environ.get("BK", "0"))
NP = int(os.environ.get("NP", "2"))
PRE = int(os.environ.get("PRE", "0"))

WS_Q = 0x000000
WS_XG1 = 0x010000
WS_XG2 = 0x020000
WS_XS1 = 0x030000
WS_XS2 = 0x040000
WS_HF = 0x050000
WS_HS = 0x051000
WS_HZ = 0x052000
WS_XR = 0x053000
WS_Q1 = 0x060000
WS_RS1 = 0x200000
WS_RS2 = 0x300000
WS_DBG = 0x400000
WS_STAMP = 0x800000
WS_H2 = 0x100000

L_WQ = 131072
L_W1 = L_WQ + 14336
L_XN = L_W1 + 7168
L_Q = L_XN + 1024
L_P = L_Q + 1024
L_M = L_P + 512
L_L = L_M + 32
L_MODE = L_L + 32
L_NONCE = L_MODE + 8
L_REL = L_NONCE + 8
LDS_BYTES = 155648

SPIN = 400000
TMO = 300
LOG2E = 0x3fb8aa3b
LOG2E16 = 0x3db8aa3b

lines = []
lab_id = [0]


def A(s):
    lines.append("    " + s)


def LBL(s):
    lines.append(s + ":")


def newlab(p):
    lab_id[0] += 1
    return f"L_{p}_{lab_id[0]}"


def vr(a, n=1):
    return f"v{a}" if n == 1 else f"v[{a}:{a+n-1}]"


def nop(n):
    while n > 0:
        k = min(n, 16)
        A(f"s_nop {k-1}")
        n -= k


S_X, S_K, S_V, S_WQ, S_WO, S_W1, S_B1, S_W2, S_B2, S_OUT, S_DBG, S_WS = 4, 6, 8, 10, 12, 16, 18, 20, 22, 24, 26, 28
sC3 = 3
sG, sJ, sW, sTAG, sMODE, sSPIN = 30, 31, 32, 33, 34, 35
sSB = 36
sT0 = 38
sT2 = 40
sT3 = 41
sVB = 42
sLB = 44
sJC = 45
sNL = 46
sNH = 47
sPK = 48
sM56 = 56
sM4 = 58
sM32 = 60
sM2 = 66
sM8 = 68
sM16 = 70
sC0 = 72
sC1 = 73
sC2 = 74
sREL = 75
sLAYER = 76
sRL = 77
sXCC = 79
sST = 80
sMH1 = 62
sMT1 = 64
sC4 = 37


def sp(a):
    return f"s[{a}:{a+1}]"


def st_local(items):
    lf = newlab("f")
    le = newlab("e")
    A(f"s_cmp_eq_u32 s{sMODE}, 1")
    A(f"s_cbranch_scc1 {lf}")
    for r in items:
        A(r[1:] if r.startswith("!") else f"{r} sc1")
    A(f"s_branch {le}")
    LBL(lf)
    for r in items:
        A(r[1:] if r.startswith("!") else r)
    LBL(le)


def spin_check(abort="L_abort"):
    A(f"s_add_u32 s{sSPIN}, s{sSPIN}, 1")
    A(f"s_cmp_gt_u32 s{sSPIN}, {SPIN}")
    A(f"s_cbranch_scc1 {abort}")


def poll(loads, regs, tmp):
    l = newlab("poll")
    A(f"s_mov_b32 s{sSPIN}, 0")
    LBL(l)
    for x in loads:
        A(x[1:] if x.startswith("!") else f"{x} sc1")
    spin_check()
    A("s_waitcnt vmcnt(0)")
    A(f"v_and_b32 {vr(tmp)}, s{sTAG}, {vr(regs[0])}")
    for r in regs[1:]:
        A(f"v_and_b32 {vr(tmp)}, {vr(tmp)}, {vr(r)}")
    A(f"v_cmp_ne_u32 vcc, 0, {vr(tmp)}")
    A("s_nop 1")
    A("s_cmp_eq_u64 vcc, exec")
    if BK:
        ld = newlab("pd")
        A(f"s_cbranch_scc1 {ld}")
        A(f"s_sleep {BK}")
        A(f"s_branch {l}")
        LBL(ld)
    else:
        A(f"s_cbranch_scc0 {l}")


def dpp(op, d, s, ror):
    A(f"{op}_dpp {vr(d)}, {vr(s)}, {vr(d)} row_ror:{ror} row_mask:0xf bank_mask:0xf")


def allreduce(op, regs, tmps, rors, swap16=True, swap32=True):
    n = len(regs)
    if rors:
        nop(2)
    for ro in rors:
        for r in regs:
            dpp(op, r, r, ro)
        if n < 3:
            nop(3 - n)
    for which, en in (("16", swap16), ("32", swap32)):
        if not en:
            continue
        for r, t in zip(regs, tmps):
            A(f"v_mov_b32 {vr(t)}, {vr(r)}")
        nop(2)
        for r, t in zip(regs, tmps):
            A(f"v_permlane{which}_swap_b32 {vr(r)}, {vr(t)}")
        nop(1)
        for r, t in zip(regs, tmps):
            A(f"{op} {vr(r)}, {vr(r)}, {vr(t)}")


def dump(regs, slot, atmp):
    if not DEBUG:
        return
    A(f"s_lshl_b32 s{sT2}, s2, 14")
    A(f"s_add_u32 s{sT2}, s{sT2}, {WS_DBG + slot*256}")
    A(f"v_lshlrev_b32 {vr(atmp)}, 2, v0")
    A(f"v_add_u32 {vr(atmp)}, s{sT2}, {vr(atmp)}")
    for i, r in enumerate(regs):
        A(f"global_store_dword {vr(atmp)}, {vr(r)}, {sp(S_WS)} offset:{i*256}")


def stamp(idx):
    if not STAMP:
        return
    A(f"s_memrealtime s[{sST+2*idx}:{sST+2*idx+1}]")


def stamp_flush(n, base_slot, vt, vt2):
    if not STAMP:
        return
    A("s_waitcnt lgkmcnt(0)")
    A(f"s_lshl_b32 s{sT2}, s2, 3")
    A(f"s_add_u32 s{sT2}, s{sT2}, s{sW}")
    A(f"s_lshl_b32 s{sT2}, s{sT2}, 8")
    A(f"s_add_u32 s{sT2}, s{sT2}, {WS_STAMP + base_slot*4}")
    A(f"v_mov_b32 {vr(vt)}, s{sT2}")
    for i in range(n):
        A(f"v_mov_b32 {vr(vt2)}, s{sST+2*i}")
        A(f"global_store_dword {vr(vt)}, {vr(vt2)}, {sp(S_WS)} offset:{4*i}")
        nop(1)


hdr = open(f"cdna_kernels/{NAME}.s.ref").read().split("\n")
for h in hdr:
    if h.startswith("; @launch"):
        lines.append(f"; @launch grid=(256,1,1) block=(320,1,1) lds={LDS_BYTES}")
        break
    lines.append(h)
lines.extend("""; Design: one persistent launch, 256 workgroups (one per CU), 4 attention waves + 1 control wave each.
;  group g = wg&7 owns kv head g (32 CUs x 128 keys); K/V are streamed once (LDS-DMA) and kept as MFMA
;  fragments in registers for both attention layers; wq/wo/w1/w2 slices are kept per CU as well.
;  Per layer: LN+q slice -> group all-gather -> QK^T/softmax/PV partials -> group combine + wo partial
;  -> group reduce-scatter -> cross-group exchange -> group all-gather -> LN,LN,MLP partial -> same reduce.
;  Hand-offs go through d_ws with tagged words (cleared at start, validated by a per-launch nonce taken
;  from the real-time counter); group-local traffic uses L2-local stores only when all 32 workgroups of
;  the group report the same XCC id, otherwise device-scope (sc1) stores.  Every spin is bounded.""".split("\n"))
lines.append('.amdgcn_target "amdgcn-amd-amdhsa--gfx950"')
lines.append(".text")
lines.append(f".globl {NAME}_kernel")
lines.append(".p2align 8")
lines.append(f".type {NAME}_kernel,@function")
LBL(f"{NAME}_kernel")

A("s_cmp_ge_u32 s2, 256")
A("s_cbranch_scc1 L_end")
stamp(0)
A("s_load_dwordx16 s[4:19], s[0:1], 0")
A("s_load_dwordx8 s[20:27], s[0:1], 64")
A("s_load_dwordx2 s[28:29], s[0:1], 96")
A(f"s_and_b32 s{sG}, s2, 7")
A(f"s_lshr_b32 s{sJ}, s2, 3")
A(f"s_min_u32 s{sJC}, s{sJ}, 27")
A("v_lshrrev_b32 v1, 6, v0")
A("v_and_b32 v0, 63, v0")
A("s_nop 1")
A(f"v_readfirstlane_b32 s{sW}, v1")
A(f"s_mov_b32 s{sTAG}, 1")
A(f"s_mov_b32 s{sMODE}, 0")
A(f"s_mov_b32 s{sLAYER}, 0")
for r, (lo, hi) in {sM56: (-1, 0x00ffffff), sM4: (15, 0), sM32: (-1, 0), sM2: (0x00030003, 0x00030003),
                    sM8: (0xff, 0), sM16: (0xffff, 0), sMH1: (0xffff0000, 0xffff0000), sMT1: (0, -1)}.items():
    A(f"s_mov_b32 s{r}, {lo}")
    A(f"s_mov_b32 s{r+1}, {hi}")
A(f"s_mov_b32 s{sC0}, {LOG2E:#x}")
A(f"s_mov_b32 s{sC4}, {LOG2E16:#x}")
A("s_waitcnt lgkmcnt(0)")
A(f"s_cmp_eq_u32 s{sW}, 4")
A("s_cbranch_scc1 L_ctrl")

KF, VF, QF, SA, PF, OA = 16, 80, 144, 176, 184, 200
vKA = 216
vVA = 224
vQA, vPA, vPW, vMW, vMR, vMR2, vOS, vML = 228, 229, 230, 231, 232, 233, 234, 235
vt = 236

A(f"s_lshl_b32 s{sT2}, s{sG}, 25")
A(f"s_add_u32 s{sT2}, s{sT2}, 31457280")
A(f"s_lshl_b32 s{sT3}, s{sJ}, 16")
A(f"s_add_u32 s{sT2}, s{sT2}, s{sT3}")
A(f"s_lshl_b32 s{sT3}, s{sW}, 14")
A(f"s_add_u32 s{sT3}, s{sT2}, s{sT3}")
A(f"s_add_u32 s{sT0}, s{S_K}, s{sT3}")
A(f"s_addc_u32 s{sT0+1}, s{S_K+1}, 0")
A(f"s_lshl_b32 s{sT3}, s{sW}, 7")
A(f"s_add_u32 s{sT3}, s{sT2}, s{sT3}")
A(f"s_add_u32 s{sVB}, s{S_V}, s{sT3}")
A(f"s_addc_u32 s{sVB+1}, s{S_V+1}, 0")
A(f"s_lshl_b32 s{sLB}, s{sW}, 15")
A(f"s_lshl_b32 s{sT2}, s{sG}, 4")
A(f"v_mov_b32 v10, s{sT2}")
A("v_mov_b32 v8, 0")
A("v_mov_b32 v9, 0")
A(f"s_or_b32 s{sT2}, s{sJ}, s{sW}")
A(f"s_cmp_lg_u32 s{sT2}, 0")
A("s_cbranch_scc1 L_att_nolead")
A(f"s_memrealtime s[{sPK}:{sPK+1}]")
A("s_waitcnt lgkmcnt(0)")
A(f"s_and_b32 s{sPK+2}, s{sPK}, 0xfffffff0")
A(f"s_or_b32 s{sPK+3}, s{sPK+1}, 0x80000000")
A(f"v_mov_b32 v8, s{sPK+2}")
A(f"v_mov_b32 v9, s{sPK+3}")
A("s_mov_b64 exec, 1")
A(f"global_store_dwordx2 v10, v[8:9], {sp(S_DBG)}")
A("s_mov_b64 exec, -1")
LBL("L_att_nolead")
A("v_lshrrev_b32 v1, 5, v0")
A("v_and_b32 v2, 31, v0")
A("v_xor_b32 v2, v2, v1")
A("v_lshlrev_b32 v2, 4, v2")
A("v_lshlrev_b32 v1, 9, v1")
A("v_or_b32 v2, v2, v1")
A("v_lshrrev_b32 v1, 3, v0")
A("v_and_b32 v4, 7, v0")
A("v_lshrrev_b32 v5, 1, v4")
A("v_lshrrev_b32 v6, 1, v1")
A("v_and_b32 v6, 1, v6")
A("v_xor_b32 v5, v5, v6")
A("v_lshlrev_b32 v5, 5, v5")
A("v_and_b32 v4, 1, v4")
A("v_lshlrev_b32 v4, 4, v4")
A("v_or_b32 v5, v5, v4")
A("v_lshlrev_b32 v1, 9, v1")
A("v_or_b32 v5, v5, v1")
A("v_xor_b32 v6, 64, v5")
A(f"v_mov_b32 v11, {L_REL}")
A(f"s_mov_b32 s{sREL}, 0")
if TOUCH:
    A("v_mov_b32 v13, 0")
    A(f"v_mov_b32 v14, {WS_RS1}")
    for w, lst in enumerate((((S_WS, "v13"), (S_DBG, "v13")), ((S_WS, "v14"), (S_OUT, "v13")), ((S_WO, "v13"), (S_W2, "v13")), ((S_W1, "v13"), (S_V, "v13")))):
        l = newlab("tch")
        A(f"s_cmp_lg_u32 s{sW}, {w}")
        A(f"s_cbranch_scc1 {l}")
        for (sb, va) in lst:
            A(f"global_load_dword v15, {va}, {sp(sb)}")
        LBL(l)
if PRE == 0:
    A("s_barrier")
    stamp(4)


def throttle():
    l = newlab("go")
    A(f"s_cmp_lg_u32 s{sREL}, 0")
    A(f"s_cbranch_scc1 {l}")
    A("ds_read_b32 v12, v11")
    A("s_waitcnt lgkmcnt(0)")
    A(f"v_readfirstlane_b32 s{sREL}, v12")
    A(f"s_waitcnt vmcnt({WIN-1})")
    LBL(l)


for i in range(16):
    blk = i >> 2
    if (i & 3) == 0:
        A(f"s_add_u32 m0, s{sLB}, {4096*blk}")
    c = ((2 * i) & 14) * 16
    A(f"v_xor_b32 v3, {c}, v2")
    A(f"v_add_u32 v3, {4096*blk}, v3")
    if i >= WIN:
        throttle()
    A(f"global_load_lds_dwordx4 v3, {sp(sT0)} offset:{1024*(i&3)} {KVPOL}")
    if PRE and i == PRE - 1:
        A("s_barrier")
        stamp(4)
for i in range(16):
    A(f"s_add_u32 m0, s{sLB}, {16384 + 1024*i}")
    A(f"v_add_u32 v3, {4096*i}, v{5 + (i & 1)}")
    if 16 + i >= WIN:
        throttle()
    A(f"global_load_lds_dwordx4 v3, {sp(sVB)} {KVPOL}")
A("v_and_b32 v1, 15, v0")
A("v_lshrrev_b32 v2, 4, v0")
A("v_xor_b32 v3, v2, v1")
A("v_lshlrev_b32 v3, 4, v3")
A("v_lshlrev_b32 v4, 9, v1")
A("v_or_b32 v3, v3, v4")
A(f"v_add_u32 v3, s{sLB}, v3")
A(f"v_mov_b32 {vr(vKA)}, v3")
A("v_lshrrev_b32 v3, 2, v1")
A("v_and_b32 v4, 3, v0")
A("v_lshrrev_b32 v5, 1, v3")
A("v_and_b32 v5, 1, v5")
A("v_and_b32 v6, 1, v2")
A("v_lshlrev_b32 v6, 1, v6")
A("v_or_b32 v5, v5, v6")
A("v_lshlrev_b32 v6, 3, v2")
A("v_add_u32 v6, v6, v3")
A("v_lshlrev_b32 v6, 7, v6")
A("v_lshlrev_b32 v4, 3, v4")
A("v_add_u32 v6, v6, v4")
A(f"v_add_u32 v6, s{sLB}, v6")
A("v_add_u32 v6, 16384, v6")
for t in range(4):
    A(f"v_xor_b32 v7, {t}, v5")
    A("v_lshlrev_b32 v7, 5, v7")
    A(f"v_add_u32 {vr(vVA+t)}, v6, v7")
A("v_and_b32 v3, 1, v0")
A("v_lshlrev_b32 v4, 4, v2")
A("v_lshlrev_b32 v5, 9, v3")
A("v_add_u32 v5, v5, v4")
A(f"v_add_u32 {vr(vQA)}, {L_Q}, v5")
A("v_lshlrev_b32 v5, 8, v3")
A("v_add_u32 v5, v5, v4")
A(f"v_add_u32 {vr(vPA)}, {L_P}, v5")
A("v_lshlrev_b32 v5, 2, v3")
A(f"v_add_u32 {vr(vMR2)}, {L_M}, v5")
A("v_and_b32 v4, 1, v2")
A("v_lshlrev_b32 v5, 8, v4")
A("v_lshrrev_b32 v6, 1, v2")
A("v_lshlrev_b32 v6, 4, v6")
A("v_add_u32 v6, v6, v1")
A(f"s_lshl_b32 s{sT2}, s{sW}, 5")
A(f"v_add_u32 v6, s{sT2}, v6")
A("v_lshlrev_b32 v6, 1, v6")
A("v_add_u32 v5, v5, v6")
A(f"v_add_u32 {vr(vPW)}, {L_P}, v5")
A("v_lshlrev_b32 v5, 2, v4")
A(f"v_add_u32 {vr(vMR)}, {L_M}, v5")
A(f"s_lshl_b32 s{sT2}, s{sW}, 3")
A(f"v_add_u32 {vr(vMW)}, s{sT2}, {vr(vMR)}")
A(f"s_lshl_b32 s{sT2}, s{sG}, 5")
A(f"s_lshl_b32 s{sT3}, s{sW}, 2")
A(f"s_add_u32 s{sT2}, s{sT2}, s{sT3}")
A(f"s_lshl_b32 s{sT2}, s{sT2}, 12")
A(f"s_lshl_b32 s{sT3}, s{sJ}, 6")
A(f"s_add_u32 s{sT2}, s{sT2}, s{sT3}")
A(f"s_add_u32 s{sT2}, s{sT2}, {WS_H2}")
A("v_lshlrev_b32 v5, 16, v3")
A("v_lshlrev_b32 v6, 4, v2")
A("v_add_u32 v5, v5, v6")
A(f"v_add_u32 {vr(vOS)}, s{sT2}, v5")
A(f"s_lshl_b32 s{sT2}, s{sG}, 5")
A(f"s_lshl_b32 s{sT3}, s{sW}, 2")
A(f"s_add_u32 s{sT2}, s{sT2}, s{sT3}")
A(f"s_lshl_b32 s{sT2}, s{sT2}, 12")
A(f"s_lshl_b32 s{sT3}, s{sJ}, 3")
A(f"s_add_u32 s{sT2}, s{sT2}, s{sT3}")
A(f"s_add_u32 s{sT2}, s{sT2}, {WS_H2 + 2048}")
A("v_lshlrev_b32 v5, 16, v3")
A("v_lshrrev_b32 v6, 1, v0")
A("v_and_b32 v6, 3, v6")
A("v_lshlrev_b32 v6, 12, v6")
A("v_add_u32 v5, v5, v6")
A(f"v_add_u32 {vr(vML)}, s{sT2}, v5")

A("s_waitcnt vmcnt(16)")
for kk in range(8):
    A(f"v_xor_b32 v3, {64*kk}, {vr(vKA)}")
    for t in range(2):
        A(f"ds_read_b128 {vr(KF+(t*8+kk)*4,4)}, v3 offset:{t*8192}")
stamp(1)
A("s_waitcnt lgkmcnt(0)")
A("v_lshlrev_b32 v1, 4, v0")
A(f"s_lshl_b32 s{sT2}, s{sG}, 5")
A(f"s_add_u32 s{sT2}, s{sT2}, s{sJ}")
A(f"s_mul_i32 s{sT2}, s{sT2}, 14336")
A(f"s_mul_i32 s{sT3}, s{sW}, 896")
A(f"s_add_u32 s{sT2}, s{sT2}, s{sT3}")
A(f"v_add_u32 v2, s{sT2}, v1")
A(f"s_mul_i32 s{sT2}, s{sG}, 28")
A(f"s_add_u32 s{sT2}, s{sT2}, s{sJC}")
A(f"s_mul_i32 s{sC1}, s{sT2}, 7168")
A(f"s_add_u32 s{sC1}, s{sC1}, s{sT3}")
A(f"v_add_u32 v4, s{sC1}, v1")
A(f"s_mov_b64 exec, {sp(sM56)}")
for i in range(4):
    A(f"s_add_u32 m0, s{sLB}, {1024*i}")
    A(f"v_add_u32 v3, {3584*i}, v2")
    A(f"global_load_lds_dwordx4 v3, {sp(S_WO)} {W2POL}")
for i in range(2):
    A(f"s_add_u32 m0, s{sLB}, {1024*(4+i)}")
    A(f"v_add_u32 v3, {3584*i}, v4")
    A(f"global_load_lds_dwordx4 v3, {sp(S_W2)} {W2POL}")
A("s_mov_b64 exec, -1")
A(f"s_lshl_b32 s{sT3}, s{sT2}, 4")
A(f"s_mov_b32 s{sC1}, 3584")
A(f"v_mul_lo_u32 v2, s{sC1}, v0")
A(f"s_mul_i32 s{sC1}, s{sW}, 229376")
A(f"s_add_u32 s{sT3}, s{sT3}, s{sC1}")
A(f"v_add_u32 v2, s{sT3}, v2")
A(f"s_lshl_b32 s{sT2}, s{sW}, 10")
A(f"s_add_u32 m0, s{sT2}, {L_W1}")
A("s_nop 0")
A(f"global_load_lds_dwordx4 v2, {sp(S_W1)} {WPOL}")
A(f"s_cmp_eq_u32 s{sW}, 3")
A("s_cbranch_scc1 L_att_now1")
A(f"s_add_u32 m0, s{sT2}, {L_W1 + 4096}")
A(f"v_add_u32 v2, {229376*4}, v2")
A(f"global_load_lds_dwordx4 v2, {sp(S_W1)} {WPOL}")
LBL("L_att_now1")
A(f"s_cmp_lg_u32 s{sW}, 0")
A("s_cbranch_scc1 L_att_nox")
A(f"s_cmp_lg_u32 s{sJ}, 0")
A("s_cbranch_scc1 L_att_nolead2")
A("s_mov_b64 exec, 1")
A(f"global_store_dwordx2 v10, v[8:9], {sp(S_DBG)} offset:128 sc1")
A("s_mov_b64 exec, -1")
LBL("L_att_nolead2")
for i in range(4):
    A(f"v_mov_b32 v{12+i}, 0")
A(f"s_lshl_b32 s{sT2}, s{sJ}, 9")
A(f"s_lshl_b32 s{sT3}, s{sG}, 6")
A(f"s_add_u32 s{sT2}, s{sT2}, s{sT3}")
A(f"s_add_u32 s{sT2}, s{sT2}, {WS_XS1}")
A("v_lshlrev_b32 v11, 4, v0")
A(f"v_add_u32 v11, s{sT2}, v11")
A(f"v_add_u32 v7, {WS_XS2-WS_XS1}, v11")
A(f"s_mov_b64 exec, {sp(sM4)}")
A(f"global_store_dwordx4 v11, v[12:15], {sp(S_WS)} sc1")
A(f"global_store_dwordx4 v7, v[12:15], {sp(S_WS)} sc1")
A("s_mov_b64 exec, -1")
LBL("L_att_nox")
if EXP:
    A("s_waitcnt vmcnt(0)")
    stamp(2)
    stamp(3)
    stamp_flush(5, 0, vt, vt+1)
    A("s_endpgm")

LBL("L_att_layer")
A("s_barrier")
for kk in range(8):
    A(f"ds_read_b128 {vr(QF+4*kk,4)}, {vr(vQA)} offset:{64*kk}")
for kk in range(8):
    if kk % 2 == 0:
        A(f"s_waitcnt lgkmcnt({6-kk})")
    for t in range(2):
        c = "0" if kk == 0 else vr(SA+4*t, 4)
        A(f"v_mfma_f32_16x16x32_bf16 {vr(SA+4*t,4)}, {vr(QF+4*kk,4)}, {vr(KF+(t*8+kk)*4,4)}, {c}")
nop(9)
A(f"v_cndmask_b32 {vr(vt)}, {vr(SA)}, {vr(SA+1)}, {sp(sMH1)}")
A(f"v_cndmask_b32 {vr(vt+1)}, {vr(SA+4)}, {vr(SA+5)}, {sp(sMH1)}")
A(f"v_cndmask_b32 {vr(vt)}, {vr(vt)}, {vr(vt+1)}, {sp(sMT1)}")
A(f"v_cvt_pk_bf16_f32 {vr(vt)}, {vr(vt)}, {vr(vt)}")
A(f"v_lshlrev_b32 {vr(vt)}, 16, {vr(vt)}")
A(f"v_mul_f32 {vr(vt)}, 0x3d800000, {vr(vt)}")
A(f"v_mov_b32 {vr(vt+1)}, {vr(vt)}")
allreduce("v_max_f32", [vt+1], [vt+2], [8, 4, 2, 1], swap16=False, swap32=True)
A(f"ds_write_b32 {vr(vMW)}, {vr(vt+1)}")
A("s_waitcnt lgkmcnt(0)")
A("s_barrier")
A(f"ds_read2_b32 {vr(vt+2,2)}, {vr(vMR)} offset0:0 offset1:2")
A(f"ds_read2_b32 {vr(vt+4,2)}, {vr(vMR)} offset0:4 offset1:6")
A("s_waitcnt lgkmcnt(0)")
A(f"v_max_f32 {vr(vt+2)}, {vr(vt+2)}, {vr(vt+3)}")
A(f"v_max3_f32 {vr(vt+2)}, {vr(vt+2)}, {vr(vt+4)}, {vr(vt+5)}")
A(f"v_sub_f32 {vr(vt)}, {vr(vt)}, {vr(vt+2)}")
A(f"v_mul_f32 {vr(vt)}, s{sC0}, {vr(vt)}")
A(f"v_exp_f32 {vr(vt)}, {vr(vt)}")
nop(1)
A(f"v_cvt_pk_bf16_f32 {vr(vt+1)}, {vr(vt)}, {vr(vt)}")
A(f"ds_write_b16 {vr(vPW)}, {vr(vt+1)}")
allreduce("v_add_f32", [vt], [vt+2], [8, 4, 2, 1], swap16=False, swap32=True)
A(f"ds_write_b32 {vr(vMW)}, {vr(vt)} offset:32")
A(f"s_cmp_lg_u32 s{sLAYER}, 0")
A("s_cbranch_scc1 L_att_skipv")
A(f"s_cmp_eq_u32 s{sW}, 0")
A("s_cbranch_scc1 L_att_vw0")
A(f"s_cmp_eq_u32 s{sW}, 3")
A("s_cbranch_scc1 L_att_vw3")
A("s_waitcnt vmcnt(8)")
A("s_branch L_att_vwd")
LBL("L_att_vw3")
A("s_waitcnt vmcnt(7)")
A("s_branch L_att_vwd")
LBL("L_att_vw0")
A("s_waitcnt vmcnt(10)")
LBL("L_att_vwd")
for t in range(4):
    for ks in range(4):
        for hh in range(2):
            A(f"ds_read_b64_tr_b16 {vr(VF+(t*4+ks)*4+2*hh,2)}, {vr(vVA+t)} offset:{ks*4096+hh*512}")
stamp(2)
LBL("L_att_skipv")
A("s_waitcnt lgkmcnt(0)")
A("s_barrier")
for ks in range(4):
    A(f"ds_read_b128 {vr(PF+4*ks,4)}, {vr(vPA)} offset:{64*ks}")
A(f"ds_read2_b32 {vr(vt+2,2)}, {vr(vMR2)} offset0:0 offset1:2")
A(f"ds_read2_b32 {vr(vt+4,2)}, {vr(vMR2)} offset0:4 offset1:6")
A(f"ds_read2_b32 {vr(vt+6,2)}, {vr(vMR2)} offset0:8 offset1:10")
A(f"ds_read2_b32 {vr(vt+8,2)}, {vr(vMR2)} offset0:12 offset1:14")
A(f"v_mov_b32 {vr(vt)}, {L_MODE}")
A(f"ds_read_b32 {vr(vt+1)}, {vr(vt)}")
for ks in range(4):
    A(f"s_waitcnt lgkmcnt({8-ks})")
    for t in range(4):
        c = "0" if ks == 0 else vr(OA+4*t, 4)
        A(f"v_mfma_f32_16x16x32_bf16 {vr(OA+4*t,4)}, {vr(VF+(t*4+ks)*4,4)}, {vr(PF+4*ks,4)}, {c}")
A("s_waitcnt lgkmcnt(0)")
A(f"v_readfirstlane_b32 s{sMODE}, {vr(vt+1)}")
A(f"v_max_f32 {vr(vt+2)}, {vr(vt+2)}, {vr(vt+3)}")
A(f"v_max3_f32 {vr(vt+2)}, {vr(vt+2)}, {vr(vt+4)}, {vr(vt+5)}")
A(f"v_add_f32 {vr(vt+3)}, {vr(vt+6)}, {vr(vt+7)}")
A(f"v_add_f32 {vr(vt+4)}, {vr(vt+8)}, {vr(vt+9)}")
A(f"v_add_f32 {vr(vt+3)}, {vr(vt+3)}, {vr(vt+4)}")
A(f"v_bfi_b32 {vr(vt+2)}, 3, s{sTAG}, {vr(vt+2)}")
for t in range(1, 4):
    A(f"v_add_u32 {vr(vt+3+t)}, {4096*t}, {vr(vOS)}")
A(f"s_mov_b64 exec, {sp(sM8)}")
st_local([f"global_store_dwordx2 {vr(vML)}, {vr(vt+2,2)}, {sp(S_WS)}"])
for t in range(4):
    A(f"v_bfi_b32 {vr(OA+4*t)}, 3, s{sTAG}, {vr(OA+4*t)}") if False else None
A(f"s_mov_b64 exec, {sp(sM2)}")
for t in range(4):
    A(f"v_bfi_b32 {vr(OA+4*t)}, 3, s{sTAG}, {vr(OA+4*t)}")
st_local([
    f"global_store_dwordx4 {vr(vOS)}, {vr(OA,4)}, {sp(S_WS)}",
    f"global_store_dwordx4 {vr(vt+4)}, {vr(OA+4,4)}, {sp(S_WS)}",
    f"global_store_dwordx4 {vr(vt+5)}, {vr(OA+8,4)}, {sp(S_WS)}",
    f"global_store_dwordx4 {vr(vt+6)}, {vr(OA+12,4)}, {sp(S_WS)}"])
A("s_mov_b64 exec, -1")
A(f"s_cmp_lg_u32 s{sLAYER}, 0")
A("s_cbranch_scc1 L_att_noxr")
A("s_waitcnt vmcnt(0)")
A("s_barrier")
A(f"s_cmp_lg_u32 s{sW}, 0")
A("s_cbranch_scc1 L_att_noxr")
A(f"v_mov_b32 {vr(vt+2)}, {L_NONCE}")
A(f"ds_read_b64 {vr(vt+4,2)}, {vr(vt+2)}")
A(f"s_lshl_b32 s{sT2}, s{sJ}, 6")
A(f"s_lshl_b32 s{sT3}, s{sG}, 3")
A(f"s_add_u32 s{sT2}, s{sT2}, s{sT3}")
A(f"s_add_u32 s{sT2}, s{sT2}, {WS_XR}")
A(f"v_mov_b32 {vr(vt+2)}, s{sT2}")
A("s_waitcnt lgkmcnt(0)")
A("s_mov_b64 exec, 1")
A(f"global_store_dwordx2 {vr(vt+2)}, {vr(vt+4,2)}, {sp(S_WS)} sc1")
A("s_mov_b64 exec, -1")
LBL("L_att_noxr")
A(f"s_add_u32 s{sLAYER}, s{sLAYER}, 1")
A(f"s_lshl_b32 s{sTAG}, s{sTAG}, 1")
A(f"s_cmp_lt_u32 s{sLAYER}, 2")
A("s_cbranch_scc1 L_att_layer")
stamp(3)
stamp_flush(5, 0, vt, vt+1)
A("s_endpgm")

BF, AF, WO, W2, X = 16, 72, 128, 192, 224
XO, B2O, B1 = 232, 236, 255
T = 240
vZ = 80
LBL("L_ctrl")
for i in range(4):
    A(f"v_mov_b32 v{vZ+i}, 0")
for i in range(8):
    A(f"v_mov_b32 {vr(X+i)}, 0")
    A(f"v_mov_b32 {vr(AF+i)}, 0")
A("v_lshlrev_b32 v5, 4, v0")
A(f"s_mov_b64 exec, {sp(sM56)}")
A(f"global_load_dwordx4 {vr(AF,4)}, v5, {sp(S_X)}")
A("s_mov_b64 exec, -1")
A("v_and_b32 v14, 3, v0")
A("v_lshlrev_b32 v14, 3, v14")
A(f"s_lshl_b32 s{sT2}, s{sJC}, 5")
A(f"v_add_u32 v14, s{sT2}, v14")
A(f"global_load_dwordx2 {vr(T,2)}, v14, {sp(S_X)}")
A(f"global_load_dwordx2 {vr(B2O,2)}, v14, {sp(S_B2)}")
A(f"s_mul_i32 s{sT2}, s{sG}, 28")
A(f"s_add_u32 s{sT2}, s{sT2}, s{sJC}")
A(f"s_lshl_b32 s{sT3}, s{sT2}, 4")
A(f"v_and_b32 {vr(T+3)}, 7, v0")
A(f"v_lshlrev_b32 {vr(T+3)}, 1, {vr(T+3)}")
A(f"v_add_u32 {vr(T+3)}, s{sT3}, {vr(T+3)}")
A(f"global_load_ushort {vr(B1)}, {vr(T+3)}, {sp(S_B1)}")
A("v_lshrrev_b32 v15, 1, v0")
A("v_lshlrev_b32 v15, 13, v15")
A(f"v_and_b32 {vr(T+2)}, 1, v0")
A(f"v_lshlrev_b32 {vr(T+2)}, 4, {vr(T+2)}")
A(f"v_add_u32 v15, v15, {vr(T+2)}")
A(f"s_lshl_b32 s{sT2}, s{sG}, 10")
A(f"s_lshl_b32 s{sT3}, s{sJ}, 5")
A(f"s_add_u32 s{sT2}, s{sT2}, s{sT3}")
A(f"v_add_u32 v15, s{sT2}, v15")
for i in range(14):
    A(f"s_mov_b32 m0, {L_WQ + 1024*i}")
    A(f"v_add_u32 {vr(T+2)}, {262144*i}, v15")
    A(f"global_load_lds_dwordx4 {vr(T+2)}, {sp(S_WQ)} {WPOL}")
A(f"s_lshl_b32 s{sT2}, s{sG}, 5")
A(f"s_add_u32 s{sT2}, s{sT2}, s{sJ}")
A(f"s_lshl_b32 s{sT3}, s{sT2}, 12")
A(f"s_add_u32 s{sT3}, s{sT3}, {WS_H2}")
A(f"v_add_u32 v6, s{sT3}, v5")
A(f"s_lshl_b32 s{sT3}, s{sT2}, 11")
A(f"s_add_u32 s{sT3}, s{sT3}, {WS_RS1}")
A(f"v_add_u32 v7, s{sT3}, v5")
A(f"v_add_u32 v8, {WS_RS2-WS_RS1}, v7")
A(f"s_lshl_b32 s{sT2}, s{sG}, 11")
A(f"s_lshl_b32 s{sT3}, s{sJ}, 6")
A(f"s_add_u32 s{sT2}, s{sT2}, s{sT3}")
A(f"v_add_u32 v9, s{sT2}, v5")
A(f"v_add_u32 v10, {WS_XG1}, v9")
A(f"v_add_u32 v11, {WS_XG2}, v9")
A(f"s_lshl_b32 s{sT2}, s{sJ}, 9")
A(f"s_lshl_b32 s{sT3}, s{sG}, 6")
A(f"s_add_u32 s{sT2}, s{sT2}, s{sT3}")
A(f"s_add_u32 s{sT2}, s{sT2}, {WS_XS1}")
A(f"v_add_u32 v12, s{sT2}, v5")
A(f"v_add_u32 v13, {WS_XS2-WS_XS1}, v12")


def local_clears(pol, z):
    for i in range(2):
        A(f"global_store_dwordx4 v6, {vr(z,4)}, {sp(S_WS)} offset:{1024*i} {pol}")
    A(f"s_mov_b64 exec, {sp(sM16)}")
    A(f"global_store_dwordx4 v6, {vr(z,4)}, {sp(S_WS)} offset:2048 {pol}")
    A("s_mov_b64 exec, -1")
    for r in (7, 8):
        for i in range(2):
            A(f"global_store_dwordx4 v{r}, {vr(z,4)}, {sp(S_WS)} offset:{1024*i} {pol}")
    A(f"s_mov_b64 exec, {sp(sM4)}")
    for r in (9, 10, 11):
        A(f"global_store_dwordx4 v{r}, {vr(z,4)}, {sp(S_WS)} {pol}")
    A("s_mov_b64 exec, -1")


local_clears("", vZ)
A(f"v_mov_b32 {vr(T+4)}, {L_REL}")
A(f"ds_write_b32 {vr(T+4)}, v{vZ}")
A("s_waitcnt lgkmcnt(0)")
A(f"s_getreg_b32 s{sXCC}, hwreg(HW_REG_XCC_ID)")
A(f"s_and_b32 s{sXCC}, s{sXCC}, 15")
A(f"s_lshl_b32 s{sT2}, s{sG}, 4")
A(f"v_mov_b32 v15, s{sT2}")
A(f"s_mov_b32 s{sSPIN}, 0")
A(f"v_mov_b32 {vr(T+4)}, 0")
A(f"v_mov_b32 {vr(T+5)}, 0")
A(f"global_load_dwordx2 {vr(T+2,2)}, v15, {sp(S_DBG)} sc1")
A("s_barrier")
if EXP:
    A(f"v_mov_b32 {vr(T+4)}, {L_REL}")
    A(f"v_mov_b32 {vr(T+5)}, 1")
    A(f"ds_write_b32 {vr(T+4)}, {vr(T+5)}")
    A("s_waitcnt vmcnt(0)")
    stamp(1)
    stamp_flush(11, 0, T+8, T+9)
    A("s_endpgm")
A(f"v_mov_b32 {vr(T+6)}, v15")
A("v_lshrrev_b32 v3, 4, v0")
A("v_and_b32 v4, 15, v0")
A("v_lshrrev_b32 v4, 2, v4")
A("v_lshlrev_b32 v15, 3, v3")
A("v_add_u32 v15, v15, v4")
vWQA, vW1A, vXNW, vXNR = T+10, T+11, T+12, T+13
A(f"v_lshlrev_b32 {vr(vWQA)}, 5, v15")
A("v_and_b32 v4, 3, v0")
A("v_lshlrev_b32 v4, 3, v4")
A(f"v_add_u32 {vr(vWQA)}, {vr(vWQA)}, v4")
A(f"v_add_u32 {vr(vWQA)}, {L_WQ}, {vr(vWQA)}")
A(f"v_lshlrev_b32 {vr(vW1A)}, 4, v15")
A("v_and_b32 v4, 1, v0")
A("v_lshlrev_b32 v4, 3, v4")
A(f"v_add_u32 {vr(vW1A)}, {vr(vW1A)}, v4")
A(f"v_add_u32 {vr(vW1A)}, {L_W1}, {vr(vW1A)}")
A(f"v_add_u32 {vr(vXNW)}, {L_XN}, v5")
A(f"v_lshlrev_b32 {vr(vXNR)}, 4, v3")
A(f"v_add_u32 {vr(vXNR)}, {L_XN}, {vr(vXNR)}")
A(f"v_mov_b32 v15, {vr(T+6)}")
A("s_branch L_nonce_nos")
LBL("L_nonce")
A(f"global_load_dwordx2 {vr(T+2,2)}, v15, {sp(S_DBG)} sc1")
A(f"s_cmp_lt_u32 s{sSPIN}, {TMO}")
A("s_cbranch_scc1 L_nonce_nos")
A(f"global_load_dwordx2 {vr(T+4,2)}, v15, {sp(S_DBG)} offset:128 sc1")
LBL("L_nonce_nos")
spin_check()
A("s_waitcnt vmcnt(0)")
A(f"v_or_b32 {vr(T+2)}, {vr(T+2)}, {vr(T+4)}")
A(f"v_or_b32 {vr(T+3)}, {vr(T+3)}, {vr(T+5)}")
A("s_nop 0")
A(f"v_readfirstlane_b32 s{sNL}, {vr(T+2)}")
A(f"v_readfirstlane_b32 s{sNH}, {vr(T+3)}")
A("s_nop 1")
A(f"s_cmp_lt_i32 s{sNH}, 0")
A("s_cbranch_scc0 L_nonce")
stamp(1)
A(f"v_mov_b32 {vr(T+4)}, {L_NONCE}")
A(f"ds_write_b64 {vr(T+4)}, {vr(T+2,2)}")


def load_bfrags(addr, kstep, hstep):
    for kk in range(14):
        for hh in range(2):
            A(f"ds_read_b64_tr_b16 {vr(BF+4*kk+2*hh,2)}, {vr(addr)} offset:{kk*kstep+hh*hstep}")


load_bfrags(vWQA, 1024, 128)
for i in range(4):
    A(f"v_lshlrev_b32 {vr(X+2*i)}, 16, {vr(AF+i)}")
    A(f"v_and_b32 {vr(X+2*i+1)}, 0xffff0000, {vr(AF+i)}")
for i in range(2):
    A(f"v_lshlrev_b32 {vr(XO+2*i)}, 16, {vr(T+i)}")
    A(f"v_and_b32 {vr(XO+2*i+1)}, 0xffff0000, {vr(T+i)}")
A(f"v_and_b32 {vr(B2O+3)}, 0xffff0000, {vr(B2O+1)}")
A(f"v_lshlrev_b32 {vr(B2O+2)}, 16, {vr(B2O+1)}")
A(f"v_and_b32 {vr(B2O+1)}, 0xffff0000, {vr(B2O)}")
A(f"v_lshlrev_b32 {vr(B2O)}, 16, {vr(B2O)}")
A(f"v_lshlrev_b32 {vr(B1)}, 16, {vr(B1)}")


def layernorm(xin, xout, pk, t):
    s1, s2, a, b = t, t+1, t+2, t+3
    A(f"v_add_f32 {vr(s1)}, {vr(xin)}, {vr(xin+1)}")
    A(f"v_mul_f32 {vr(s2)}, {vr(xin)}, {vr(xin)}")
    A(f"v_fmac_f32 {vr(s2)}, {vr(xin+1)}, {vr(xin+1)}")
    for i in range(2, 8):
        A(f"v_add_f32 {vr(s1)}, {vr(s1)}, {vr(xin+i)}")
        A(f"v_fmac_f32 {vr(s2)}, {vr(xin+i)}, {vr(xin+i)}")
    allreduce("v_add_f32", [s1, s2], [a, b], [8, 4, 2, 1])
    A(f"v_mul_f32 {vr(s1)}, 0x3b124925, {vr(s1)}")
    A(f"v_mul_f32 {vr(s2)}, 0x3b124925, {vr(s2)}")
    A(f"v_fma_f32 {vr(s2)}, -{vr(s1)}, {vr(s1)}, {vr(s2)}")
    A(f"v_max_f32 {vr(s2)}, 0, {vr(s2)}")
    A(f"v_cvt_pk_bf16_f32 {vr(a)}, {vr(s1)}, {vr(s2)}")
    A(f"v_lshlrev_b32 {vr(s1)}, 16, {vr(a)}")
    A(f"v_and_b32 {vr(s2)}, 0xffff0000, {vr(a)}")
    A(f"v_add_f32 {vr(s2)}, 0x3727c5ac, {vr(s2)}")
    A(f"v_cvt_pk_bf16_f32 {vr(a)}, {vr(s2)}, {vr(s2)}")
    A(f"v_lshlrev_b32 {vr(s2)}, 16, {vr(a)}")
    A(f"v_sqrt_f32 {vr(s2)}, {vr(s2)}")
    nop(1)
    A(f"v_cvt_pk_bf16_f32 {vr(a)}, {vr(s2)}, {vr(s2)}")
    A(f"v_lshlrev_b32 {vr(s2)}, 16, {vr(a)}")
    A(f"v_rcp_f32 {vr(b)}, {vr(s2)}")
    d0, d1, q0, q1 = t+4, t+5, t+6, t+7
    for i in range(4):
        A(f"v_sub_f32 {vr(d0)}, {vr(xin+2*i)}, {vr(s1)}")
        A(f"v_sub_f32 {vr(d1)}, {vr(xin+2*i+1)}, {vr(s1)}")
        A(f"v_cvt_pk_bf16_f32 {vr(a)}, {vr(d0)}, {vr(d1)}")
        A(f"v_lshlrev_b32 {vr(d0)}, 16, {vr(a)}")
        A(f"v_and_b32 {vr(d1)}, 0xffff0000, {vr(a)}")
        A(f"v_mul_f32 {vr(q0)}, {vr(d0)}, {vr(b)}")
        A(f"v_mul_f32 {vr(q1)}, {vr(d1)}, {vr(b)}")
        A(f"v_fma_f32 {vr(d0)}, -{vr(q0)}, {vr(s2)}, {vr(d0)}")
        A(f"v_fma_f32 {vr(d1)}, -{vr(q1)}, {vr(s2)}, {vr(d1)}")
        A(f"v_fmac_f32 {vr(q0)}, {vr(d0)}, {vr(b)}")
        A(f"v_fmac_f32 {vr(q1)}, {vr(d1)}, {vr(b)}")
        A(f"v_cvt_pk_bf16_f32 {vr(pk+i)}, {vr(q0)}, {vr(q1)}")
        if xout is not None:
            A(f"v_lshlrev_b32 {vr(xout+2*i)}, 16, {vr(pk+i)}")
            A(f"v_and_b32 {vr(xout+2*i+1)}, 0xffff0000, {vr(pk+i)}")


def matvec(pk, acc):
    A(f"s_mov_b64 exec, {sp(sM56)}")
    A(f"ds_write_b128 {vr(vXNW)}, {vr(pk,4)}")
    A("s_mov_b64 exec, -1")
    A("s_waitcnt lgkmcnt(0)")
    for kk in range(14):
        A(f"ds_read_b128 {vr(AF+4*kk,4)}, {vr(vXNR)} offset:{64*kk}")
    for kk in range(14):
        if kk % 2 == 0:
            A(f"s_waitcnt lgkmcnt({max(0, 12-kk)})")
        c = "0" if kk == 0 else vr(acc, 4)
        A(f"v_mfma_f32_16x16x32_bf16 {vr(acc,4)}, {vr(AF+4*kk,4)}, {vr(BF+4*kk,4)}, {c}")
    nop(9)


PK = T
ACC = T+4
LNT = AF
H = AF+16
G = AF+24


def own_record(wsbase, pol):
    A(f"s_or_b32 s{sT2}, s{sNL}, s{sXCC}")
    A(f"v_mov_b32 {vr(H+4)}, s{sT2}")
    A(f"v_mov_b32 {vr(H+5)}, s{sNH}")
    A(f"s_lshl_b32 s{sT2}, s{sG}, 8")
    A(f"s_lshl_b32 s{sT3}, s{sJ}, 3")
    A(f"s_add_u32 s{sT2}, s{sT2}, s{sT3}")
    A(f"s_add_u32 s{sT2}, s{sT2}, {wsbase}")
    A(f"v_mov_b32 {vr(H+7)}, s{sT2}")
    A("s_mov_b64 exec, 1")
    A(f"global_store_dwordx2 {vr(H+7)}, {vr(H+4,2)}, {sp(S_WS)} {pol}")
    A("s_mov_b64 exec, -1")


def q1_store(pol):
    A(f"s_mov_b64 exec, {sp(sM16)}")
    A(f"global_store_dwordx2 {vr(G+2)}, {vr(G,2)}, {sp(S_WS)} {pol}")
    A("s_mov_b64 exec, -1")


LBL("L_ctrl_layer")
A("s_waitcnt lgkmcnt(0)")
layernorm(X, None, PK, LNT)
matvec(PK, ACC)
A(f"v_cvt_pk_bf16_f32 {vr(ACC)}, {vr(ACC)}, {vr(ACC)}")
A(f"v_lshlrev_b32 {vr(ACC)}, 16, {vr(ACC)}")
stamp(2)
A(f"s_cmp_lg_u32 s{sLAYER}, 0")
A("s_cbranch_scc1 L_ctrl_pubq")
A(f"s_and_b32 s{sC1}, s{sNH}, 0xffff")
A(f"v_or_b32 {vr(G)}, s{sC1}, {vr(ACC)}")
A(f"v_mov_b32 {vr(G+1)}, s{sNL}")
A(f"s_lshl_b32 s{sT2}, s{sG}, 12")
A(f"s_add_u32 s{sT2}, s{sT2}, {WS_Q1}")
A(f"s_lshl_b32 s{sT3}, s{sJ}, 7")
A(f"s_add_u32 s{sT3}, s{sT3}, s{sT2}")
A(f"v_lshlrev_b32 {vr(G+2)}, 3, v0")
A(f"v_add_u32 {vr(G+2)}, s{sT3}, {vr(G+2)}")
A(f"v_lshlrev_b32 {vr(H+3)}, 6, v0")
A(f"v_add_u32 {vr(H+3)}, s{sT2}, {vr(H+3)}")
q1_store("")
own_record(WS_HF, "")
A(f"s_mov_b32 s{sSPIN}, 0")
LBL("L_q1")
for i in range(4):
    A(f"global_load_dwordx4 {vr(AF+4*i,4)}, {vr(H+3)}, {sp(S_WS)} offset:{16*i} sc1")
spin_check()
A(f"s_cmp_lg_u32 s{sSPIN}, {TMO}")
A("s_cbranch_scc1 L_q1_nos")
q1_store("sc1")
own_record(WS_HS, "sc1")
LBL("L_q1_nos")
A("s_waitcnt vmcnt(0)")
A(f"v_xor_b32 {vr(H+4)}, s{sNL}, {vr(AF+1)}")
for i in range(1, 8):
    A(f"v_xor_b32 {vr(H+5)}, s{sNL}, {vr(AF+2*i+1)}")
    A(f"v_or_b32 {vr(H+4)}, {vr(H+4)}, {vr(H+5)}")
for i in range(8):
    A(f"v_xor_b32 {vr(H+5)}, s{sC1}, {vr(AF+2*i)}")
    A(f"v_and_b32 {vr(H+5)}, 0xffff, {vr(H+5)}")
    A(f"v_or_b32 {vr(H+4)}, {vr(H+4)}, {vr(H+5)}")
A(f"v_cmp_eq_u32 vcc, 0, {vr(H+4)}")
A("s_nop 1")
A("s_cmp_eq_u64 vcc, exec")
A("s_cbranch_scc0 L_q1")
for i in range(1, 8):
    A(f"v_mov_b32 {vr(AF+i)}, {vr(AF+2*i)}")
A(f"v_mov_b32 {vr(H)}, {L_REL}")
A(f"v_mov_b32 {vr(H+1)}, 1")
A(f"ds_write_b32 {vr(H)}, {vr(H+1)}")
A("s_branch L_ctrl_gotq")
LBL("L_ctrl_pubq")
A(f"v_or_b32 {vr(ACC)}, s{sTAG}, {vr(ACC)}")
A(f"v_mul_u32_u24 {vr(T+8)}, 12, v0")
A(f"v_sub_u32 {vr(T+8)}, v9, {vr(T+8)}")
A(f"s_lshl_b32 s{sT2}, s{sG}, 11")
A(f"v_lshlrev_b32 {vr(T+9)}, 5, v0")
A(f"v_add_u32 {vr(T+9)}, s{sT2}, {vr(T+9)}")
A(f"s_mov_b64 exec, {sp(sM16)}")
st_local([f"global_store_dword {vr(T+8)}, {vr(ACC)}, {sp(S_WS)}"])
A("s_mov_b64 exec, -1")
poll([f"global_load_dwordx4 {vr(AF,4)}, {vr(T+9)}, {sp(S_WS)}",
      f"global_load_dwordx4 {vr(AF+4,4)}, {vr(T+9)}, {sp(S_WS)} offset:16"],
     list(range(AF, AF+8)), T+8)
LBL("L_ctrl_gotq")
A(f"s_mov_b32 s{sC3}, 0x07060302")
for i in range(4):
    A(f"v_perm_b32 {vr(AF+8+i)}, {vr(AF+2*i+1)}, {vr(AF+2*i)}, s{sC3}")
A(f"v_add_u32 v15, {L_Q}, v5")
A(f"ds_write_b128 v15, {vr(AF+8,4)}")
A("s_waitcnt lgkmcnt(0)")
stamp(3)
A("s_barrier")
A(f"s_cmp_eq_u32 s{sLAYER}, 0")
A("s_cbranch_scc1 L_ctrl_b1")
load_bfrags(vW1A, 512, 64)
A("s_barrier")
A("s_waitcnt lgkmcnt(0)")
A("s_barrier")
A("s_branch L_ctrl_l2")
LBL("L_ctrl_b1")
A("s_barrier")
A(f"s_lshl_b32 s{sT2}, s{sG}, 8")
A(f"s_add_u32 s{sT2}, s{sT2}, {WS_HF}")
A("v_and_b32 v15, 31, v0")
A("v_lshlrev_b32 v15, 3, v15")
A(f"v_add_u32 v15, s{sT2}, v15")
A(f"v_add_u32 {vr(AF+14)}, {WS_HS-WS_HF}, v15")
A(f"s_mov_b32 s{sSPIN}, 0")
A(f"s_mov_b32 s{sC1}, 0")
A(f"v_mov_b32 {vr(H+2)}, 0")
A(f"v_mov_b32 {vr(H+3)}, 0")
LBL("L_hello")
A(f"global_load_dwordx2 {vr(H,2)}, v15, {sp(S_WS)} sc1")
A(f"s_cmp_eq_u32 s{sC1}, 0")
A("s_cbranch_scc1 L_hello_nos")
A(f"global_load_dwordx2 {vr(H+2,2)}, {vr(AF+14)}, {sp(S_WS)} sc1")
LBL("L_hello_nos")
spin_check()
A("s_waitcnt vmcnt(0)")
A(f"v_and_b32 {vr(H+4)}, -16, {vr(H)}")
A(f"v_xor_b32 {vr(H+4)}, s{sNL}, {vr(H+4)}")
A(f"v_xor_b32 {vr(H+5)}, s{sNH}, {vr(H+1)}")
A(f"v_or_b32 {vr(H+4)}, {vr(H+4)}, {vr(H+5)}")
A(f"v_cmp_eq_u32 {sp(sT0)}, 0, {vr(H+4)}")
A(f"v_and_b32 {vr(H+4)}, -16, {vr(H+2)}")
A(f"v_xor_b32 {vr(H+4)}, s{sNL}, {vr(H+4)}")
A(f"v_xor_b32 {vr(H+5)}, s{sNH}, {vr(H+3)}")
A(f"v_or_b32 {vr(H+4)}, {vr(H+4)}, {vr(H+5)}")
A(f"v_cmp_eq_u32 vcc, 0, {vr(H+4)}")
A("s_nop 1")
A(f"v_cndmask_b32 {vr(H)}, {vr(H+2)}, {vr(H)}, {sp(sT0)}")
A(f"s_or_b64 {sp(sT0)}, {sp(sT0)}, vcc")
A(f"v_and_b32 {vr(H)}, 15, {vr(H)}")
A(f"v_cmp_ne_u32 vcc, s{sXCC}, {vr(H)}")
A("s_nop 1")
A(f"s_and_b64 vcc, vcc, {sp(sT0)}")
A("s_cmp_lg_u64 vcc, 0")
A("s_cbranch_scc1 L_slow")
A(f"s_cmp_eq_u64 {sp(sT0)}, exec")
A("s_cbranch_scc1 L_fast")
A(f"s_cmp_lt_u32 s{sSPIN}, {TMO}")
A("s_cbranch_scc1 L_hello")
A(f"s_cmp_lg_u32 s{sC1}, 0")
A("s_cbranch_scc1 L_hello")
A(f"s_mov_b32 s{sC1}, 1")
q1_store("sc1")
own_record(WS_HS, "sc1")
A("s_branch L_hello")
LBL("L_slow")
q1_store("sc1")
own_record(WS_HS, "sc1")
for i in range(4):
    A(f"v_mov_b32 {vr(AF+8+i)}, 0")
local_clears("sc1", AF+8)
A("s_waitcnt vmcnt(0)")
own_record(WS_HZ, "sc1")
A(f"v_add_u32 {vr(AF+14)}, {WS_HZ-WS_HF}, v15")
A(f"s_mov_b32 s{sSPIN}, 0")
LBL("L_hello2")
A(f"global_load_dwordx2 {vr(H,2)}, {vr(AF+14)}, {sp(S_WS)} sc1")
spin_check()
A("s_waitcnt vmcnt(0)")
A(f"v_and_b32 {vr(H+4)}, -16, {vr(H)}")
A(f"v_xor_b32 {vr(H+4)}, s{sNL}, {vr(H+4)}")
A(f"v_xor_b32 {vr(H+5)}, s{sNH}, {vr(H+1)}")
A(f"v_or_b32 {vr(H+4)}, {vr(H+4)}, {vr(H+5)}")
A(f"v_cmp_eq_u32 vcc, 0, {vr(H+4)}")
A("s_nop 1")
A("s_cmp_eq_u64 vcc, exec")
A("s_cbranch_scc0 L_hello2")
A(f"s_mov_b32 s{sMODE}, 0")
A("s_branch L_modew")
LBL("L_fast")
A(f"s_mov_b32 s{sMODE}, 1")
LBL("L_modew")
A(f"v_mov_b32 {vr(H)}, {L_MODE}")
A(f"v_mov_b32 {vr(H+1)}, s{sMODE}")
A(f"ds_write_b32 {vr(H)}, {vr(H+1)}")
A("s_waitcnt lgkmcnt(0)")
A("s_barrier")
A("s_barrier")
A(f"v_add_u32 v15, 65536, v5")
for r in range(16):
    base = "v5" if (r % 4) < 2 else "v15"
    A(f"ds_read_b128 {vr(WO+4*r,4)}, {base} offset:{(r%2)*32768 + (r//4)*1024}")
for r in range(8):
    base = "v5" if (r % 4) < 2 else "v15"
    A(f"ds_read_b128 {vr(W2+4*r,4)}, {base} offset:{(r%2)*32768 + (4 + r//4)*1024}")
A("s_waitcnt lgkmcnt(0)")
A(f"s_mov_b32 s{sC1}, 0x05040100")
A(f"s_mov_b32 s{sC3}, 0x07060302")
for base, npairs in ((WO, 8), (W2, 4)):
    for p in range(npairs):
        for k in range(4):
            ra = base + 8*p + k
            rb = base + 8*p + 4 + k
            A(f"v_perm_b32 {vr(T+8)}, {vr(rb)}, {vr(ra)}, s{sC1}")
            A(f"v_perm_b32 {vr(rb)}, {vr(rb)}, {vr(ra)}, s{sC3}")
            A(f"v_mov_b32 {vr(ra)}, {vr(T+8)}")
load_bfrags(vW1A, 512, 64)
LBL("L_ctrl_l2")
stamp(4)
A("v_lshrrev_b32 v15, 2, v0")
A("v_lshlrev_b32 v15, 3, v15")
A("v_sub_u32 v15, v15, v5")
A("v_add_u32 v15, v15, v6")
OB = AF
oa, ob, mla, mlb = AF, AF+8, AF+12, AF+14
poll([f"global_load_dwordx4 {vr(oa,4)}, v6, {sp(S_WS)}",
      f"global_load_dwordx4 {vr(ob,4)}, v6, {sp(S_WS)} offset:1024",
      f"global_load_dwordx2 {vr(mla,2)}, v15, {sp(S_WS)} offset:2048",
      f"global_load_dwordx2 {vr(mlb,2)}, v15, {sp(S_WS)} offset:2176"],
     [oa, ob, mla, mlb], T+8)
stamp(5)
mx, wa, wb, ls = AF+16, AF+17, AF+18, AF+19
A(f"v_max_f32 {vr(mx)}, {vr(mla)}, {vr(mlb)}")
allreduce("v_max_f32", [mx], [AF+20], [4, 8])
A(f"v_sub_f32 {vr(wa)}, {vr(mla)}, {vr(mx)}")
A(f"v_sub_f32 {vr(wb)}, {vr(mlb)}, {vr(mx)}")
A(f"v_mul_f32 {vr(wa)}, s{sC0}, {vr(wa)}")
A(f"v_mul_f32 {vr(wb)}, s{sC0}, {vr(wb)}")
A(f"v_exp_f32 {vr(wa)}, {vr(wa)}")
A(f"v_exp_f32 {vr(wb)}, {vr(wb)}")
nop(1)
A(f"v_mul_f32 {vr(ls)}, {vr(wa)}, {vr(mla+1)}")
A(f"v_fmac_f32 {vr(ls)}, {vr(wb)}, {vr(mlb+1)}")
for i in range(4):
    A(f"v_mul_f32 {vr(oa+i)}, {vr(wa)}, {vr(oa+i)}")
    A(f"v_fmac_f32 {vr(oa+i)}, {vr(wb)}, {vr(ob+i)}")
allreduce("v_add_f32", [ls, oa, oa+1, oa+2, oa+3], list(range(AF+20, AF+25)), [4, 8])
A(f"v_rcp_f32 {vr(ls)}, {vr(ls)}")
nop(1)
for i in range(4):
    A(f"v_mul_f32 {vr(oa+i)}, {vr(oa+i)}, {vr(ls)}")
A(f"v_cvt_pk_bf16_f32 {vr(OB+4)}, {vr(oa)}, {vr(oa+1)}")
A(f"v_cvt_pk_bf16_f32 {vr(OB+5)}, {vr(oa+2)}, {vr(oa+3)}")
dump([OB+4, OB+5], 0, 15)
nop(1)
for qq in range(4):
    for p in range(2):
        A(f"v_readlane_b32 s{sPK+2*qq+p}, {vr(OB+4+p)}, {qq}")
nop(2)
PA = AF+24


def dotpartial(base, npairs):
    for p in range(npairs):
        for c in range(8):
            w = base + 8*p + (c >> 1) + 4*(c & 1)
            if p == 0:
                A(f"v_dot2_f32_bf16 {vr(PA+c)}, s{sPK+p}, {vr(w)}, 0")
            else:
                A(f"v_dot2_f32_bf16 {vr(PA+c)}, s{sPK+p}, {vr(w)}, {vr(PA+c)}")
    nop(3)
    for c in (0, 4):
        A(f"v_bfi_b32 {vr(PA+c)}, 3, s{sTAG}, {vr(PA+c)}")


def publish_rs(wsbase):
    A(f"s_lshl_b32 s{sT2}, s{sG}, 16")
    A(f"s_lshl_b32 s{sT3}, s{sJ}, 6")
    A(f"s_add_u32 s{sT2}, s{sT2}, s{sT3}")
    A(f"s_add_u32 s{sT2}, s{sT2}, {wsbase}")
    A("v_lshrrev_b32 v15, 1, v0")
    A("v_lshlrev_b32 v15, 11, v15")
    A(f"v_and_b32 {vr(T+8)}, 1, v0")
    A(f"v_lshlrev_b32 {vr(T+8)}, 5, {vr(T+8)}")
    A(f"v_add3_u32 v15, v15, {vr(T+8)}, s{sT2}")
    A(f"s_mov_b64 exec, {sp(sM56)}")
    st_local([f"global_store_dwordx4 v15, {vr(PA,4)}, {sp(S_WS)}",
              f"global_store_dwordx4 v15, {vr(PA+4,4)}, {sp(S_WS)} offset:16"])
    A("s_mov_b64 exec, -1")


dotpartial(WO, 8)
publish_rs(WS_RS1)
stamp(6)
A(f"s_cmp_ge_u32 s{sJ}, 28")
A("s_cbranch_scc1 L_ctrl_skipmlp")


def xr_check():
    A(f"s_cmp_lg_u32 s{sLAYER}, 0")
    A("s_cbranch_scc1 L_xr_ok")
    A("v_lshlrev_b32 v15, 4, v0")
    A(f"s_lshl_b32 s{sT2}, s{sJ}, 6")
    A(f"s_add_u32 s{sT2}, s{sT2}, {WS_XR}")
    A(f"v_lshlrev_b32 {vr(AF+18)}, 3, v0")
    A(f"v_add_u32 {vr(AF+18)}, s{sT2}, {vr(AF+18)}")
    A(f"s_mov_b64 exec, {sp(sM8)}")
    A(f"s_mov_b32 s{sSPIN}, 0")
    LBL("L_xr")
    A(f"global_load_dwordx2 {vr(AF+12,2)}, v15, {sp(S_DBG)} offset:128 sc1")
    A(f"global_load_dwordx2 {vr(AF+14,2)}, {vr(AF+18)}, {sp(S_WS)} sc1")
    spin_check()
    A("s_waitcnt vmcnt(0)")
    A(f"v_xor_b32 {vr(AF+16)}, {vr(AF+12)}, {vr(AF+14)}")
    A(f"v_xor_b32 {vr(AF+17)}, {vr(AF+13)}, {vr(AF+15)}")
    A(f"v_or_b32 {vr(AF+16)}, {vr(AF+16)}, {vr(AF+17)}")
    A(f"v_cmp_eq_u32 {sp(sT0)}, 0, {vr(AF+16)}")
    A(f"v_cmp_gt_i32 vcc, 0, {vr(AF+13)}")
    A("s_nop 1")
    A(f"s_and_b64 vcc, vcc, {sp(sT0)}")
    A("s_cmp_eq_u64 vcc, exec")
    A("s_cbranch_scc0 L_xr")
    A("s_mov_b64 exec, -1")
    LBL("L_xr_ok")


def reduce_stage(vinbox, vxs, nprod, wsxs):
    a, b = AF, AF+4
    if nprod == 32:
        poll([f"global_load_dwordx4 {vr(a,4)}, v{vinbox}, {sp(S_WS)}",
              f"global_load_dwordx4 {vr(b,4)}, v{vinbox}, {sp(S_WS)} offset:1024"],
             [a, b], T+8)
    else:
        A(f"v_mov_b32 {vr(b)}, s{sTAG}")
        for i in range(1, 4):
            A(f"v_mov_b32 {vr(b+i)}, 0")
        poll([f"global_load_dwordx4 {vr(a,4)}, v{vinbox}, {sp(S_WS)}",
              "!s_mov_b32 exec_hi, 0xffff",
              f"global_load_dwordx4 {vr(b,4)}, v{vinbox}, {sp(S_WS)} offset:1024",
              "!s_mov_b64 exec, -1"],
             [a, b], T+8)
    for i in range(4):
        A(f"v_add_f32 {vr(a+i)}, {vr(a+i)}, {vr(b+i)}")
    allreduce("v_add_f32", [a, a+1, a+2, a+3], list(range(AF+8, AF+12)), [4, 8])
    A(f"v_bfi_b32 {vr(a)}, 3, s{sTAG}, {vr(a)}")
    A(f"s_mov_b64 exec, {sp(sM4)}")
    A(f"global_store_dwordx4 v{vxs}, {vr(a,4)}, {sp(S_WS)} sc1")
    A("s_mov_b64 exec, -1")
    if nprod == 32:
        xr_check()
    A(f"s_lshl_b32 s{sT2}, s{sJ}, 9")
    A(f"s_add_u32 s{sT2}, s{sT2}, {wsxs}")
    A(f"v_add_u32 v15, s{sT2}, v5")
    for i in range(4):
        A(f"v_mov_b32 {vr(b+i)}, 0")
    A(f"s_mov_b64 exec, {sp(sM32)}")
    sets = [AF+40+4*k for k in range(NP)]
    l = newlab("xs")
    de = newlab("xse")
    dl = [newlab("xsd") for _ in sets]
    A(f"s_mov_b32 s{sSPIN}, 0")
    for q in sets:
        A(f"global_load_dwordx4 {vr(q,4)}, v15, {sp(S_WS)} sc1")
    LBL(l)
    spin_check()
    for q, d in zip(sets, dl):
        A(f"s_waitcnt vmcnt({NP-1})")
        A(f"v_and_b32 {vr(T+8)}, s{sTAG}, {vr(q)}")
        A(f"v_cmp_ne_u32 vcc, 0, {vr(T+8)}")
        A("s_nop 1")
        A("s_cmp_eq_u64 vcc, exec")
        A(f"s_cbranch_scc1 {d}")
        A(f"global_load_dwordx4 {vr(q,4)}, v15, {sp(S_WS)} sc1")
    A(f"s_branch {l}")
    for q, d in zip(sets, dl):
        LBL(d)
        for i in range(4):
            A(f"v_mov_b32 {vr(b+i)}, {vr(q+i)}")
        A(f"s_branch {de}")
    LBL(de)
    A("s_mov_b64 exec, -1")
    allreduce("v_add_f32", [b, b+1, b+2, b+3], list(range(AF+8, AF+12)), [4, 8], swap16=True, swap32=False)
    return b


def bf16round(regs, tmp):
    for i in range(0, len(regs), 2):
        A(f"v_cvt_pk_bf16_f32 {vr(tmp)}, {vr(regs[i])}, {vr(regs[i+1])}")
        A(f"v_lshlrev_b32 {vr(regs[i])}, 16, {vr(tmp)}")
        A(f"v_and_b32 {vr(regs[i+1])}, 0xffff0000, {vr(tmp)}")


def gather_x(wsxg):
    A(f"s_lshl_b32 s{sT2}, s{sG}, 11")
    A(f"s_add_u32 s{sT2}, s{sT2}, {wsxg}")
    A("v_lshlrev_b32 v15, 5, v0")
    A(f"v_add_u32 v15, s{sT2}, v15")
    A(f"s_mov_b64 exec, {sp(sM56)}")
    poll([f"global_load_dwordx4 {vr(X,4)}, v15, {sp(S_WS)}",
          f"global_load_dwordx4 {vr(X+4,4)}, v15, {sp(S_WS)} offset:16"],
         [X, X+4], T+8)
    for i in (0, 4):
        A(f"v_and_b32 {vr(X+i)}, 0xffff0000, {vr(X+i)}")
    A("s_mov_b64 exec, -1")


r = reduce_stage(7, 12, 32, WS_XS1)
bf16round([r, r+1, r+2, r+3], T+8)
for i in range(4):
    A(f"v_add_f32 {vr(XO+i)}, {vr(XO+i)}, {vr(r+i)}")
bf16round([XO, XO+1, XO+2, XO+3], T+8)
A(f"v_or_b32 {vr(r)}, s{sTAG}, {vr(XO)}")
for i in range(1, 4):
    A(f"v_mov_b32 {vr(r+i)}, {vr(XO+i)}")
A(f"s_mov_b64 exec, {sp(sM4)}")
st_local([f"global_store_dwordx4 v10, {vr(r,4)}, {sp(S_WS)}"])
A("s_mov_b64 exec, -1")
stamp(7)
gather_x(WS_XG1)
dump(list(range(X, X+8)), 2, 15)
Y = AF+16
layernorm(X, Y, PK, LNT)
A(f"s_mov_b64 exec, {sp(sM56)}")
A("s_not_b64 exec, exec")
for i in range(8):
    A(f"v_mov_b32 {vr(Y+i)}, 0")
A("s_mov_b64 exec, -1")
layernorm(Y, None, PK, LNT)
matvec(PK, ACC)
h = ACC
A(f"v_cvt_pk_bf16_f32 {vr(h)}, {vr(h)}, {vr(h)}")
A(f"v_lshlrev_b32 {vr(h)}, 16, {vr(h)}")
A(f"v_add_f32 {vr(h)}, {vr(h)}, {vr(B1)}")
A(f"v_cvt_pk_bf16_f32 {vr(h)}, {vr(h)}, {vr(h)}")
A(f"v_lshlrev_b32 {vr(h)}, 16, {vr(h)}")
A(f"v_mul_f32 {vr(h+1)}, {vr(h)}, {vr(h)}")
A(f"v_mul_f32 {vr(h+1)}, {vr(h+1)}, {vr(h)}")
A(f"v_mov_b32 {vr(h+2)}, {vr(h)}")
A(f"v_fmac_f32 {vr(h+2)}, 0x3d372713, {vr(h+1)}")
A(f"v_mul_f32 {vr(h+2)}, 0x40135761, {vr(h+2)}")
A(f"v_exp_f32 {vr(h+2)}, {vr(h+2)}")
nop(1)
A(f"v_add_f32 {vr(h+2)}, 1.0, {vr(h+2)}")
A(f"v_rcp_f32 {vr(h+2)}, {vr(h+2)}")
nop(1)
A(f"v_sub_f32 {vr(h+2)}, 1.0, {vr(h+2)}")
A(f"v_mul_f32 {vr(h)}, {vr(h)}, {vr(h+2)}")
A(f"v_cvt_pk_bf16_f32 {vr(h)}, {vr(h)}, {vr(h)}")
dump([h], 12, 15)
nop(1)
for p in range(4):
    A(f"v_readlane_b32 s{sRL}, {vr(h)}, {2*p}")
    A(f"v_readlane_b32 s{sRL+1}, {vr(h)}, {2*p+1}")
    nop(1)
    A(f"s_pack_ll_b32_b16 s{sPK+p}, s{sRL}, s{sRL+1}")
nop(2)
dotpartial(W2, 4)
publish_rs(WS_RS2)
stamp(8)
r = reduce_stage(8, 13, 28, WS_XS2)
bf16round([r, r+1, r+2, r+3], T+8)
for i in range(4):
    A(f"v_add_f32 {vr(r+i)}, {vr(r+i)}, {vr(B2O+i)}")
bf16round([r, r+1, r+2, r+3], T+8)
for i in range(4):
    A(f"v_add_f32 {vr(XO+i)}, {vr(XO+i)}, {vr(r+i)}")
bf16round([XO, XO+1, XO+2, XO+3], T+8)
A(f"s_cmp_lg_u32 s{sLAYER}, 0")
A("s_cbranch_scc1 L_ctrl_final")
A(f"v_or_b32 {vr(r)}, s{sTAG}, {vr(XO)}")
for i in range(1, 4):
    A(f"v_mov_b32 {vr(r+i)}, {vr(XO+i)}")
A(f"s_mov_b64 exec, {sp(sM4)}")
st_local([f"global_store_dwordx4 v11, {vr(r,4)}, {sp(S_WS)}"])
A("s_mov_b64 exec, -1")
LBL("L_ctrl_skipmlp")
A(f"s_cmp_lg_u32 s{sLAYER}, 0")
A("s_cbranch_scc1 L_ctrl_done")
stamp(9)
load_bfrags(vWQA, 1024, 128)
gather_x(WS_XG2)
dump(list(range(X, X+8)), 14, 15)
stamp(10)
stamp_flush(11, 0, T+8, T+9)
A(f"s_mov_b32 s{sLAYER}, 1")
A(f"s_mov_b32 s{sTAG}, 2")
A("s_branch L_ctrl_layer")

LBL("L_ctrl_final")
A(f"s_cmp_lg_u32 s{sG}, 0")
A("s_cbranch_scc1 L_ctrl_done")
A(f"v_cvt_pk_bf16_f32 {vr(T)}, {vr(XO)}, {vr(XO+1)}")
A(f"v_cvt_pk_bf16_f32 {vr(T+1)}, {vr(XO+2)}, {vr(XO+3)}")
A(f"s_mov_b64 exec, {sp(sM4)}")
A(f"global_store_dwordx2 v14, {vr(T,2)}, {sp(S_OUT)}")
A("s_mov_b64 exec, -1")
LBL("L_ctrl_done")
stamp(9)
stamp_flush(11, 16, T+8, T+9)
LBL("L_abort")
LBL("L_end")
A("s_endpgm")

lines.append('.section .rodata,"a"')
lines.append(".p2align 6")
lines.append(f".amdhsa_kernel {NAME}_kernel")
lines.append("  .amdhsa_next_free_vgpr 256")
lines.append("  .amdhsa_next_free_sgpr 102")
lines.append("  .amdhsa_accum_offset 256")
lines.append("  .amdhsa_group_segment_fixed_size 0")
lines.append("  .amdhsa_kernarg_size 104")
lines.append("  .amdhsa_user_sgpr_count 2")
lines.append("  .amdhsa_user_sgpr_kernarg_segment_ptr 1")
lines.append("  .amdhsa_system_sgpr_workgroup_id_x 1")
lines.append(".end_amdhsa_kernel")
open(OUT, "w").write("\n".join(lines) + "\n")
print("wrote", OUT, len(lines), "lines")
```
